```python
import torch

def _softmax(x, axis=-1):
    return torch.softmax(x, dim=axis)
def _gelu(x):
    return torch.nn.functional.gelu(x, approximate="tanh")
def _silu(x):
    return torch.nn.functional.silu(x)
def _sigmoid(x):
    return torch.sigmoid(x)
def _layernorm(x, axis=-1, eps=1e-5):
    m = x.mean(dim=axis, keepdim=True)
    v = x.var(dim=axis, keepdim=True, unbiased=False)
    return (x - m) / torch.sqrt(v + eps)
def _scatter_add(tgt, idx, src, axis=0):
    return tgt.clone().index_add_(axis, idx, src)
def _segment_sum(src, seg, n):
    out = torch.zeros((n,) + src.shape[1:], dtype=src.dtype)
    return out.index_add_(0, seg, src)
def _pad(x, pw):
    flat = tuple(v for pair in reversed(pw) for v in pair)
    return torch.nn.functional.pad(x, flat)

kernel_name = 'concat_heads__sliding_block__softmax_full_mha__prompt'

def setup_inputs():

    _w = (lambda a: (lambda t: t.to(torch.bfloat16) if t.is_floating_point() else t)(torch.as_tensor(a)))
    def _A_setup():
        B, S, D = 1, 2048, 640
        return {
            "x": _w((lambda *s: torch.randn(*s, dtype=torch.bfloat16) * 0.4)(B, S, D)),
            "wqkv": _w((lambda *s: torch.randn(*s, dtype=torch.bfloat16) * 0.4)(D, 3 * D)),
            "wo": _w((lambda *s: torch.randn(*s, dtype=torch.bfloat16) * 0.05)(D, D)),
        }
    _A_in = _A_setup()

    def _B_setup():
        B, S, D = 1, 2048, 640
        return {
            "x": _w((lambda *s: torch.randn(*s, dtype=torch.bfloat16) * 0.2)(B, S, D)),
            "wqkv": _w((lambda *s: torch.randn(*s, dtype=torch.bfloat16) * 0.4)(D, 3 * D)),
            "wo": _w((lambda *s: torch.randn(*s, dtype=torch.bfloat16) * 0.1)(D, D)),
        }
    _B_in = _B_setup()

    return {
        "A_x": _A_in["x"],
        "A_wqkv": _A_in["wqkv"],
        "A_wo": _A_in["wo"],
        "B_x": _B_in["x"],
        "B_wqkv": _B_in["wqkv"],
        "B_wo": _B_in["wo"],
    }

def reference(A_x, A_wqkv, A_wo, B_x, B_wqkv, B_wo):
    def _A_ref(x, wqkv, wo):
        B, S, D = x.shape
        H = 32; Dh = D // H; W = 256
        qkv = (lambda x, *d: x.permute(*d))((x @ wqkv).reshape(B, S, 3, H, Dh), 2, 0, 3, 1, 4)
        q, k, v = qkv[0], qkv[1], qkv[2]
        scores = torch.einsum("bhqd,bhkd->bhqk", q, k) * (Dh ** -0.5)
        idx = torch.arange(S)
        mask = (idx[:, None] - idx[None, :] >= 0) & (idx[:, None] - idx[None, :] < W)
        scores = torch.where(mask[None, None], scores, -1e9)
        p = _softmax(scores, axis=-1)
        o = torch.einsum("bhqk,bhkd->bhqd", p, v)
        return (lambda x, *d: x.permute(*d))(o, 0, 2, 1, 3).reshape(B, S, D) @ wo

    def _B_ref(x, wqkv, wo):
        B, S, D = x.shape
        H = 32; Dh = D // H
        qkv = (lambda x, *d: x.permute(*d))((x @ wqkv).reshape(B, S, 3, H, Dh), 2, 0, 3, 1, 4)
        q, k, v = qkv[0], qkv[1], qkv[2]
        scale = Dh ** -0.5
        scores = torch.einsum("bhqd,bhkd->bhqk", q, k) * scale
        p = _softmax(scores, axis=-1)
        o = torch.einsum("bhqk,bhkd->bhqd", p, v)
        return (lambda x, *d: x.permute(*d))(o, 0, 2, 1, 3).reshape(B, S, D) @ wo

    a = _A_ref(A_x, A_wqkv, A_wo)
    b = _B_ref(B_x, B_wqkv, B_wo)
    return torch.concatenate([a, b], axis=-1)
```

```python
class Asm:
    def __init__(self):
        self.L = []
        self.uid = 0
    def e(self, s):
        for line in s.split("\n"):
            line = line.strip()
            if not line: continue
            if line.endswith(":") or line.startswith("."):
                self.L.append(line)
            else:
                self.L.append("    " + line)
    def c(self, s):
        self.L.append("    ; " + s)
    def label(self, name):
        self.L.append(name + ":")
    def newlabel(self, base):
        self.uid += 1
        return f"L_{base}_{self.uid}"
    def text(self):
        return "\n".join(self.L) + "\n"

class Regs:
    def __init__(self, start=0):
        self.n = start
        self.names = {}
    def alloc(self, name, cnt=1, align=1):
        if cnt >= 2 and align == 1: align = 2
        self.n = (self.n + align - 1) // align * align
        r = self.n
        self.n += cnt
        self.names[name] = (r, cnt)
        return r

def vr(base, cnt):
    return f"v{base}" if cnt == 1 else f"v[{base}:{base+cnt-1}]"
def sr(base, cnt):
    return f"s{base}" if cnt == 1 else f"s[{base}:{base+cnt-1}]"

def magic(d, maxn):
    m = (2**32 + d - 1) // d
    for n in range(maxn + 1):
        assert (n * m) >> 32 == n // d
    return m

def kd(name, vgpr, sgpr=96, accum=None):
    acc = accum if accum is not None else (vgpr + 3) // 4 * 4
    return f""".amdhsa_kernel {name}
  .amdhsa_next_free_vgpr {vgpr}
  .amdhsa_next_free_sgpr {sgpr}
  .amdhsa_accum_offset {acc}
  .amdhsa_group_segment_fixed_size 0
  .amdhsa_kernarg_size 72
  .amdhsa_user_sgpr_count 2
  .amdhsa_user_sgpr_kernarg_segment_ptr 1
  .amdhsa_system_sgpr_workgroup_id_x 1
.end_amdhsa_kernel
"""
```

```python
from asmlib import *
import struct, math

KV_OFF = 0
Q_OFF = 10485760
O_OFF = 15728640
WS_SIZE = 20971520
QSCALE = math.log2(math.e) / math.sqrt(20.0)
def f32bits(x): return struct.unpack("<I", struct.pack("<f", x))[0]

STAGE = 49152
K1_LDS = 3 * STAGE
MF = "v_mfma_f32_32x32x16_bf16"

def gen_k1(a, name="qkv_kernel"):
    R = Regs(1)
    vL = R.alloc("L"); vT0 = R.alloc("t0"); vT1 = R.alloc("t1"); vT2 = R.alloc("t2"); vT3 = R.alloc("t3")
    vXo = R.alloc("Xo", 2); vWo = R.alloc("Wo", 4)
    vXa = R.alloc("Xa", 4); vWa = R.alloc("Wa", 2)
    XF = [[R.alloc(f"xf{b}{i}", 4, 4) for i in range(2)] for b in range(2)]
    WF = [[R.alloc(f"wf{b}{i}", 4, 4) for i in range(2)] for b in range(2)]
    ACC = [[R.alloc(f"acc{i}{j}", 16, 4) for j in range(2)] for i in range(2)]
    nv = R.n
    end = f"{name}_end"
    a.e(f".p2align 8\n.globl {name}\n.type {name},@function\n{name}:")
    a.e(f"""
    s_cmp_ge_u32 s2, 256
    s_cbranch_scc1 {end}
    s_load_dwordx2 s[24:25], s[0:1], 0
    s_load_dwordx2 s[26:27], s[0:1], 8
    s_load_dwordx2 s[28:29], s[0:1], 24
    s_load_dwordx2 s[30:31], s[0:1], 32
    s_load_dwordx2 s[12:13], s[0:1], 64
    v_lshrrev_b32 v{vT0}, 6, v0
    v_and_b32 v{vL}, 63, v0
    s_and_b32 s3, s2, 7
    v_readfirstlane_b32 s16, v{vT0}
    s_lshr_b32 s32, s2, 3
    s_lshr_b32 s19, s3, 2
    s_and_b32 s17, s3, 1
    s_lshl_b32 s17, s17, 3
    s_and_b32 s33, s32, 7
    s_add_u32 s17, s17, s33
    s_bfe_u32 s18, s3, 0x10001
    s_lshl_b32 s18, s18, 2
    s_lshr_b32 s33, s32, 3
    s_add_u32 s18, s18, s33
    """)
    a.c("s16=wave s17=rb s18=hg s19=br")
    a.c("X DMA source offsets")
    a.e(f"""
    s_lshl_b32 s33, s17, 7
    s_lshl_b32 s34, s16, 4
    s_add_u32 s33, s33, s34
    s_mul_i32 s33, s33, 1280
    s_movk_i32 s35, 1280
    v_lshrrev_b32 v{vT0}, 3, v{vL}
    v_mul_u32_u24 v{vT0}, s35, v{vT0}
    v_add_u32 v{vT0}, s33, v{vT0}
    v_and_b32 v{vT1}, 7, v{vL}
    v_lshrrev_b32 v{vT2}, 4, v{vL}
    v_xor_b32 v{vT1}, v{vT1}, v{vT2}
    v_lshl_add_u32 v{vXo}, v{vT1}, 4, v{vT0}
    v_xor_b32 v{vT1}, 4, v{vT1}
    v_lshl_add_u32 v{vXo+1}, v{vT1}, 4, v{vT0}
    v_add_u32 v{vXo+1}, {8*1280}, v{vXo+1}
    """)
    a.c("W DMA source offsets")
    m30 = magic(30, 2048); m10 = magic(10, 64)
    a.e(f"""
    s_mov_b32 s34, {m30}
    s_mov_b32 s35, {m10}
    s_lshl_b32 s33, s16, 8
    s_mul_i32 s36, s18, 160
    s_movk_i32 s37, 3840
    s_movk_i32 s38, 1120
    s_mov_b32 s39, 0x40000000
    """)
    for t in range(4):
        a.e(f"""
        v_add_u32 v{vT0}, s33, v{vL}
        v_add_u32 v{vT0}, {64*t}, v{vT0}
        v_mul_hi_u32 v{vT1}, s34, v{vT0}
        v_cmp_gt_u32 vcc, 1920, v{vT0}
        v_mul_u32_u24 v{vT2}, 30, v{vT1}
        v_sub_u32 v{vT0}, v{vT0}, v{vT2}
        v_mul_hi_u32 v{vT2}, s35, v{vT0}
        v_mul_u32_u24 v{vT2}, s38, v{vT2}
        v_lshl_add_u32 v{vT0}, v{vT0}, 4, v{vT2}
        v_add_u32 v{vT0}, s36, v{vT0}
        v_and_b32 v{vT2}, 0x78, v{vT1}
        v_bfe_u32 v{vT3}, v{vT1}, 1, 2
        v_or_b32 v{vT2}, v{vT2}, v{vT3}
        v_and_b32 v{vT3}, 1, v{vT1}
        v_lshl_or_b32 v{vT2}, v{vT3}, 2, v{vT2}
        v_mad_u32_u24 v{vT0}, v{vT2}, s37, v{vT0}
        v_mov_b32 v{vT1}, s39
        v_cndmask_b32 v{vWo+t}, v{vT1}, v{vT0}, vcc
        """)
    a.e(f"""
    s_waitcnt lgkmcnt(0)
    s_cmp_eq_u32 s19, 0
    s_cselect_b64 s[4:5], s[24:25], s[28:29]
    s_cselect_b64 s[8:9], s[26:27], s[30:31]
    s_mov_b32 s6, 2621440
    s_mov_b32 s7, 0x20000
    s_mov_b32 s10, 2457600
    s_mov_b32 s11, 0x20000
    s_mov_b32 s14, {WS_SIZE}
    s_mov_b32 s15, 0x20000
    s_mov_b32 s20, 0
    s_mov_b32 s21, 0
    s_lshl_b32 s40, s16, 11
    s_lshl_b32 s41, s16, 12
    s_add_u32 s41, s41, 16384
    """)
    def dma(fill=None):
        fill = list(fill or [])
        def F():
            a.e(fill.pop(0) if fill else "s_nop 0")
        a.e(f"s_add_u32 s42, s22, s40")
        a.e(f"s_add_u32 s43, s22, s41")
        for t in range(2):
            a.e(f"s_add_u32 m0, s42, {1024*t}")
            F()
            a.e(f"buffer_load_dwordx4 v{vXo+t}, s[4:7], s20 offen lds")
        for t in range(4):
            a.e(f"s_add_u32 m0, s43, {1024*t}")
            F()
            a.e(f"buffer_load_dwordx4 v{vWo+t}, s[8:11], s21 offen lds")
        a.e("s_add_u32 s20, s20, 128")
        a.e(f"s_add_u32 s21, s21, {64*3840}")
        assert not fill
    a.c("prologue DMA: stages 0,1,2")
    lp = a.newlabel("pro")
    a.e("s_mov_b32 s22, 0")
    a.label(lp)
    dma()
    a.e(f"""
    s_add_u32 s22, s22, {STAGE}
    s_cmp_lt_u32 s22, {3*STAGE}
    s_cbranch_scc1 {lp}
    s_mov_b32 s22, 0
    """)
    a.c("LDS read addresses")
    a.e(f"""
    s_and_b32 s33, s16, 1
    s_lshl_b32 s33, s33, 13
    v_and_b32 v{vT0}, 31, v{vL}
    v_lshlrev_b32 v{vT0}, 7, v{vT0}
    v_add_u32 v{vT0}, s33, v{vT0}
    v_bfe_u32 v{vT1}, v{vL}, 1, 3
    v_lshrrev_b32 v{vT2}, 5, v{vL}
    v_xor_b32 v{vT1}, v{vT1}, v{vT2}
    """)
    for s in range(4):
        a.e(f"v_xor_b32 v{vT3}, {2*s}, v{vT1}")
        a.e(f"v_lshl_add_u32 v{vXa+s}, v{vT3}, 4, v{vT0}")
    a.e(f"""
    v_lshrrev_b32 v{vT0}, 5, v{vL}
    v_lshlrev_b32 v{vT0}, 2, v{vT0}
    v_bfe_u32 v{vT1}, v{vL}, 2, 2
    v_add_u32 v{vT0}, v{vT0}, v{vT1}
    v_mul_u32_u24 v{vT0}, 960, v{vT0}
    v_add_u32 v{vT0}, 16384, v{vT0}
    v_bfe_u32 v{vT1}, v{vL}, 4, 1
    v_and_b32 v{vT2}, 3, v{vL}
    """)
    for i in range(2):
        for j in range(2):
            for r in range(16):
                a.e(f"v_mov_b32 v{ACC[i][j]+r}, 0")
    a.e(f"""
    s_lshr_b32 s23, s16, 1
    s_mov_b32 s44, 0
    s_cmp_ge_u32 s23, 2
    s_cbranch_scc1 {name}_c23
    """)
    def reads(s, b):
        for i in range(2):
            a.e(f"ds_read_b128 {vr(XF[b][i],4)}, v{vXa+s} offset:{4096*i}")
        for j in range(2):
            a.e(f"ds_read_b64_tr_b16 {vr(WF[b][j],2)}, v{vWa+j} offset:{7680*s}")
            a.e(f"ds_read_b64_tr_b16 {vr(WF[b][j]+2,2)}, v{vWa+j} offset:{7680*s+480}")
    def mfmas(b, ori):
        out = []
        for j in range(2):
            for i in range(2):
                A, B = (WF[b][j], XF[b][i]) if ori[j] else (XF[b][i], WF[b][j])
                out.append(f"{MF} {vr(ACC[i][j],16)}, {vr(A,4)}, {vr(B,4)}, {vr(ACC[i][j],16)}")
        return out
    def mainloop(ori):
        lp = a.newlabel("k1loop")
        a.e("s_waitcnt vmcnt(12)")
        a.e("s_barrier")
        reads(0, 0)
        a.e(".p2align 4")
        a.label(lp)
        for s in range(3):
            reads(s + 1, (s + 1) & 1)
            a.e("s_waitcnt lgkmcnt(6)")
            for m in mfmas(s & 1, ori): a.e(m)
        a.e(f"""
        s_add_u32 s45, s22, {STAGE}
        s_cmp_eq_u32 s45, {3*STAGE}
        s_cselect_b32 s45, 0, s45
        s_sub_u32 s46, s45, s22
        s_cmp_ge_u32 s44, 7
        s_cselect_b32 s6, 0, s6
        s_cselect_b32 s10, 0, s10
        """)
        for s in range(4): a.e(f"v_add_u32 v{vXa+s}, s46, v{vXa+s}")
        for j in range(2): a.e(f"v_add_u32 v{vWa+j}, s46, v{vWa+j}")
        a.e("s_waitcnt vmcnt(6) lgkmcnt(0)")
        a.e("s_barrier")
        reads(0, 0)
        dma(mfmas(1, ori))
        a.e(f"""
        s_mov_b32 s22, s45
        s_add_u32 s44, s44, 1
        s_cmp_lt_u32 s44, 10
        s_cbranch_scc1 {lp}
        """)
        a.c("epilogue common: s47 = rec0")
        a.e(f"""
        s_lshl_b32 s47, s19, 5
        s_lshl_b32 s33, s18, 2
        s_add_u32 s47, s47, s33
        s_lshl_b32 s47, s47, 6
        s_lshl_b32 s33, s17, 2
        s_add_u32 s47, s47, s33
        s_and_b32 s33, s16, 1
        s_lshl_b32 s33, s33, 1
        s_add_u32 s47, s47, s33
        s_mov_b32 s48, {f32bits(QSCALE)}
        s_mov_b32 s49, {f32bits(QSCALE)}
        s_waitcnt lgkmcnt(0)
        s_nop 7
        """)
    def cvt8(dst, src):
        for e in range(4):
            a.e(f"v_cvt_pk_bf16_f32 v{dst+e}, v{src+2*e}, v{src+2*e+1}")
    tmp = [XF[0][0], XF[0][1], XF[1][0], XF[1][1], WF[0][0], WF[0][1], WF[1][0], WF[1][1]]
    def epi_qk(j, hl_expr):
        a.e(hl_expr)
        a.e(f"v_lshlrev_b32 v{vT0}, 4, v{vL}")
        for i in range(2):
            acc = ACC[i][j]
            tq = tmp[4*j + 2*i]; tk = tmp[4*j + 2*i + 1]
            a.e(f"s_add_u32 s51, s50, {i}")
            a.e(f"s_mul_i32 s52, s51, 1280")
            a.e(f"s_add_u32 s52, s52, {Q_OFF}")
            a.e(f"s_mul_i32 s53, s51, 2560")
            for e in range(4):
                a.e(f"v_pk_mul_f32 {vr(acc+2*e,2)}, {vr(acc+2*e,2)}, s[48:49]")
            cvt8(tk, acc + 8)
            cvt8(tq, acc)
            a.e(f"buffer_store_dwordx4 {vr(tk,4)}, v{vT0}, s[12:15], s53 offen")
            a.e(f"buffer_store_dwordx4 {vr(tq,4)}, v{vT0}, s[12:15], s52 offen")
    def epi_rem(j):
        a.e(f"""
        v_cmp_gt_u32 vcc, 32, v{vL}
        v_and_b32 v{vT0}, 31, v{vL}
        v_lshlrev_b32 v{vT0}, 3, v{vT0}
        v_add_u32 v{vT0}, 1024, v{vT0}
        v_add_u32 v{vT3}, {Q_OFF}, v{vT0}
        v_cndmask_b32 v{vT0}, v{vT0}, v{vT3}, vcc
        v_mov_b32 v{vT1}, 2560
        v_mov_b32 v{vT3}, 1280
        v_cndmask_b32 v{vT1}, v{vT1}, v{vT3}, vcc
        v_mov_b32 v{vT2}, 1.0
        v_mov_b32 v{vT3}, s48
        v_cndmask_b32 v{vT2}, v{vT2}, v{vT3}, vcc
        """)
        for i in range(2):
            acc = ACC[i][j]
            for r in range(16):
                a.e(f"v_mul_f32 v{acc+r}, v{vT2}, v{acc+r}")
            t0 = tmp[2*i]; t1 = tmp[2*i+1]
            cvt8(t0, acc); cvt8(t1, acc + 8)
            for hl in range(4):
                src = (t0 if hl < 2 else t1) + 2 * (hl & 1)
                a.e(f"s_add_u32 s51, s47, {hl*64+i}")
                a.e(f"v_mad_u32_u24 v{vXa+hl}, v{vT1}, s51, v{vT0}")
                a.e(f"buffer_store_dwordx2 {vr(src,2)}, v{vXa+hl}, s[12:15], 0 offen")
    m20 = magic(20, 128)
    def epi_v(j, ct):
        a.e(f"""
        s_mov_b32 s54, {m20}
        s_mov_b32 s55, {64*2560 - 320}
        v_and_b32 v{vT0}, 31, v{vL}
        v_add_u32 v{vT0}, {(ct-5)*32}, v{vT0}
        v_cmp_gt_u32 vcc, 80, v{vT0}
        v_mul_hi_u32 v{vT1}, s54, v{vT0}
        v_lshlrev_b32 v{vT0}, 4, v{vT0}
        v_mad_u32_u24 v{vT0}, v{vT1}, s55, v{vT0}
        v_lshrrev_b32 v{vT1}, 5, v{vL}
        v_mul_u32_u24 v{vT1}, 320, v{vT1}
        v_add_u32 v{vT0}, v{vT0}, v{vT1}
        v_mov_b32 v{vT1}, s39
        v_cndmask_b32 v{vWo+j}, v{vT1}, v{vT0}, vcc
        """)
        for i in range(2):
            acc = ACC[i][j]
            t0 = tmp[4*j + 2*i]; t1 = tmp[4*j + 2*i + 1]
            a.e(f"s_add_u32 s51, s47, {i}")
            a.e(f"s_mul_i32 s53, s51, 2560")
            cvt8(t0, acc); cvt8(t1, acc + 8)
            a.e(f"buffer_store_dwordx4 {vr(t0,4)}, v{vWo+j}, s[12:15], s53 offen offset:1280")
            a.e(f"buffer_store_dwordx4 {vr(t1,4)}, v{vWo+j}, s[12:15], s53 offen offset:1920")
    a.c("class 0/1")
    a.e(f"""
    s_mul_i32 s33, s23, 80
    v_mul_u32_u24 v{vT1}, 160, v{vT1}
    v_lshl_add_u32 v{vT1}, v{vT2}, 3, v{vT1}
    v_add3_u32 v{vWa}, v{vT0}, v{vT1}, s33
    v_add_u32 v{vWa+1}, 40, v{vWa}
    """)
    mainloop([True, True])
    epi_qk(0, "s_lshl_b32 s50, s23, 7\ns_add_u32 s50, s50, s47")
    epi_qk(1, "s_add_u32 s50, s50, 64")
    a.e("s_endpgm")
    a.label(f"{name}_c23")
    a.e(f"s_cmp_eq_u32 s23, 3\ns_cbranch_scc1 {name}_c3")
    a.c("class 2: remainder tile + V tile 5")
    a.e(f"""
    v_lshlrev_b32 v{vT3}, 5, v{vT1}
    v_lshl_add_u32 v{vT3}, v{vT2}, 3, v{vT3}
    v_add_u32 v{vT3}, 320, v{vT3}
    v_add_u32 v{vWa+1}, v{vT0}, v{vT3}
    v_lshrrev_b32 v{vT3}, 1, v{vT2}
    v_lshl_add_u32 v{vT3}, v{vT1}, 1, v{vT3}
    v_mul_u32_u24 v{vT3}, 40, v{vT3}
    v_and_b32 v{vT2}, 1, v{vT2}
    v_mul_u32_u24 v{vT2}, 160, v{vT2}
    v_add3_u32 v{vWa}, v{vT0}, v{vT3}, v{vT2}
    v_add_u32 v{vWa}, 32, v{vWa}
    """)
    mainloop([True, False])
    epi_rem(0)
    epi_v(1, 5)
    a.e("s_endpgm")
    a.label(f"{name}_c3")
    a.c("class 3: V tiles 6,7")
    a.e(f"""
    v_lshlrev_b32 v{vT3}, 5, v{vT1}
    v_lshl_add_u32 v{vT3}, v{vT2}, 3, v{vT3}
    v_add_u32 v{vT3}, 384, v{vT3}
    v_add_u32 v{vWa}, v{vT0}, v{vT3}
    v_add_u32 v{vWa+1}, 64, v{vWa}
    """)
    mainloop([False, False])
    epi_v(0, 6)
    epi_v(1, 7)
    a.label(end)
    a.e("s_endpgm")
    return nv
```

```python
from asmlib import *
from k1 import KV_OFF, Q_OFF, O_OFF, WS_SIZE, f32bits
MF = "v_mfma_f32_32x32x16_bf16"
MF8 = "v_mfma_f32_32x32x8_bf16"
K2_LDS = 163840
ONES = 0x3f803f80

def gen_k2(a, name="attn_kernel", U=4):
    R = Regs(1)
    vL = R.alloc("L"); vT0 = R.alloc("t0"); vT1 = R.alloc("t1"); vT2 = R.alloc("t2"); vT3 = R.alloc("t3")
    vL16 = R.alloc("l16")
    vQ2o = R.alloc("q2o")
    vK1a = R.alloc("k1a"); vK2a = R.alloc("k2a"); vVa = R.alloc("va")
    vOo = R.alloc("oo")
    vM = R.alloc("m"); vLo = R.alloc("lo")
    Q1 = [R.alloc(f"q1{i}", 4, 4) for i in range(3)]
    Q2 = [R.alloc(f"q2{i}", 2, 2) for i in range(3)]
    K1 = [R.alloc(f"k1{i}", 4, 4) for i in range(2)]
    K2 = [R.alloc(f"k2{i}", 2, 2) for i in range(2)]
    V = [R.alloc(f"v{i}", 8, 4) for i in range(2)]
    P = [R.alloc(f"p{i}", 8, 4) for i in range(2)]
    S = [R.alloc(f"s{i}", 16, 4) for i in range(2)]
    O = [R.alloc(f"o{i}", 16, 4) for i in range(2)]
    nv = R.n
    end = f"{name}_end"
    EXV = "s[20:21]"; EXLO = "s[22:23]"; EXHI = "s[24:25]"
    a.e(f".p2align 8\n.globl {name}\n.type {name},@function\n{name}:")
    a.e(f"""
    s_cmp_ge_u32 s2, 256
    s_cbranch_scc1 {end}
    s_load_dwordx2 s[4:5], s[0:1], 64
    v_lshrrev_b32 v{vT0}, 6, v0
    v_and_b32 v{vL}, 63, v0
    s_and_b32 s3, s2, 7
    v_readfirstlane_b32 s16, v{vT0}
    s_lshr_b32 s18, s2, 3
    s_lshl_b32 s17, s3, 2
    s_and_b32 s3, s18, 3
    s_add_u32 s17, s17, s3
    s_lshr_b32 s18, s18, 2
    s_mov_b32 s6, {WS_SIZE}
    s_mov_b32 s7, 0x20000
    v_lshlrev_b32 v{vL16}, 4, v{vL}
    v_cmp_gt_u32 vcc, 32, v{vL}
    v_and_b32 v{vT0}, 31, v{vL}
    v_lshlrev_b32 v{vK2a}, 3, v{vT0}
    v_add_u32 v{vK2a}, 1024, v{vK2a}
    v_mov_b32 v{vT1}, 0x40000000
    v_cndmask_b32 v{vQ2o}, v{vT1}, v{vK2a}, vcc
    """)
    a.c("s16=wave s17=head s18=qb s19=kh s26=Ta (B q-tile finalised by this wave) s27=Tb s28=T (A q-tile)")
    a.e(f"""
    s_lshr_b32 s19, s16, 2
    s_and_b32 s3, s16, 3
    s_lshl_b32 s3, s3, 1
    s_lshl_b32 s28, s18, 3
    s_add_u32 s26, s28, s3
    s_add_u32 s26, s26, s19
    s_xor_b32 s27, s26, 1
    s_add_u32 s28, s28, s16
    s_add_u32 s29, s17, 32
    s_lshl_b32 s29, s29, 6
    s_add_u32 s30, s29, s26
    s_mul_i32 s30, s30, 1280
    s_add_u32 s30, s30, {Q_OFF}
    s_add_u32 s31, s29, s27
    s_mul_i32 s31, s31, 1280
    s_add_u32 s31, s31, {Q_OFF}
    s_mul_i32 s32, s29, 2560
    s_lshl_b32 s33, s16, 10
    s_add_u32 s34, s32, s33
    s_mov_b32 m0, s33
    s_waitcnt lgkmcnt(0)
    buffer_load_dwordx4 {vr(Q1[0],4)}, v{vL16}, s[4:7], s30 offen
    buffer_load_dwordx2 {vr(Q2[0],2)}, v{vQ2o}, s[4:7], s30 offen
    buffer_load_dwordx4 {vr(Q1[1],4)}, v{vL16}, s[4:7], s31 offen
    buffer_load_dwordx2 {vr(Q2[1],2)}, v{vQ2o}, s[4:7], s31 offen
    s_mov_b32 s35, 0
    """)
    lp = a.newlabel("dma")
    a.label(lp)
    a.e(f"""
    buffer_load_dwordx4 v{vL16}, s[4:7], s34 offen lds
    s_add_u32 m0, m0, 8192
    s_add_u32 s34, s34, 8192
    s_add_u32 s35, s35, 1
    s_cmp_lt_u32 s35, 20
    s_cbranch_scc1 {lp}
    """)
    a.e(f"""
    s_mov_b32 s20, 0x000fffff
    s_mov_b32 s21, 0x000fffff
    s_mov_b32 s22, -1
    s_mov_b32 s23, 0
    s_mov_b32 s24, 0
    s_mov_b32 s25, -1
    s_mov_b32 s36, 0xff800000
    s_mov_b32 s37, 0xffff0000
    v_lshrrev_b32 v{vT1}, 5, v{vL}
    v_mul_u32_u24 v{vVa}, 320, v{vT1}
    v_lshl_add_u32 v{vVa}, v{vT0}, 4, v{vVa}
    v_add_u32 v{vVa}, 1280, v{vVa}
    v_mov_b32 v{vK1a}, v{vL16}
    v_bfe_u32 v{vT2}, v{vL}, 4, 1
    v_mul_u32_u24 v{vOo}, 20480, v{vT2}
    v_lshl_add_u32 v{vOo}, v{vT1}, 8, v{vOo}
    v_and_b32 v{vT2}, 15, v{vL}
    v_lshl_add_u32 v{vOo}, v{vT2}, 4, v{vOo}
    """)
    for p in range(2):
        for r in range(8): a.e(f"v_mov_b32 v{V[p]+r}, {ONES}")
        for r in range(2): a.e(f"v_mov_b32 v{K2[p]+r}, {ONES}")
        for r in range(16): a.e(f"v_mov_b32 v{O[p]+r}, 0")
    for r in range(8): a.e(f"v_mov_b32 v{P[1]+r}, 0")

    def readK(p, off):
        a.e(f"ds_read_b128 {vr(K1[p],4)}, v{vK1a} offset:{off}")
        a.e(f"s_mov_b64 exec, {EXLO}")
        a.e(f"ds_read_b64 {vr(K2[p],2)}, v{vK2a} offset:{off}")
        a.e(f"s_mov_b64 exec, -1")
    def readV(p, off):
        a.e(f"s_mov_b64 exec, {EXV}")
        a.e(f"ds_read_b128 {vr(V[p],4)}, v{vVa} offset:{off}")
        a.e(f"ds_read_b128 {vr(V[p]+4,4)}, v{vVa} offset:{off+640}")
        a.e(f"s_mov_b64 exec, -1")
    def qk(s, p, q):
        return [f"{MF} {vr(S[s],16)}, {vr(K1[p],4)}, {vr(Q1[q],4)}, 0",
                f"{MF8} {vr(S[s],16)}, {vr(K2[p],2)}, {vr(Q2[q],2)}, {vr(S[s],16)}"]
    def pv(o, p, pp):
        return [f"{MF} {vr(O[o],16)}, {vr(V[p],4)}, {vr(P[pp],4)}, {vr(O[o],16)}",
                f"{MF} {vr(O[o],16)}, {vr(V[p]+4,4)}, {vr(P[pp]+4,4)}, {vr(O[o],16)}"]
    def expgrp(s, pp, g):
        for r in range(4*g, 4*g+4): a.e(f"v_exp_f32 v{S[s]+r}, v{S[s]+r}")
        for e in range(2*g, 2*g+2): a.e(f"v_cvt_pk_bf16_f32 v{P[pp]+e}, v{S[s]+2*e}, v{S[s]+2*e+1}")
    def maxtree(dst, s, first=True):
        b = S[s]
        if first:
            a.e(f"v_max3_f32 v{dst}, v{b}, v{b+1}, v{b+2}")
            for r in range(3, 15, 2): a.e(f"v_max3_f32 v{dst}, v{dst}, v{b+r}, v{b+r+1}")
            a.e(f"v_max_f32 v{dst}, v{dst}, v{b+15}")
        else:
            for r in range(0, 16, 2): a.e(f"v_max3_f32 v{dst}, v{dst}, v{b+r}, v{b+r+1}")
    def crossmax(m):
        a.e(f"""
        v_mov_b32 v{vT3}, v{m}
        s_nop 1
        v_permlane32_swap_b32 v{vT3}, v{m}
        s_nop 1
        v_max_f32 v{m}, v{m}, v{vT3}
        """)
    def patchQ(q, m):
        a.e(f"""
        v_sub_f32 v{vT0}, 0, v{m}
        v_and_b32 v{vT1}, s37, v{vT0}
        v_sub_f32 v{vT0}, v{vT0}, v{vT1}
        v_and_b32 v{vT2}, s37, v{vT0}
        v_sub_f32 v{vT0}, v{vT0}, v{vT2}
        v_lshrrev_b32 v{vT1}, 16, v{vT1}
        s_mov_b64 exec, {EXHI}
        v_or_b32 v{Q2[q]}, v{vT1}, v{vT2}
        v_lshrrev_b32 v{Q2[q]+1}, 16, v{vT0}
        s_mov_b64 exec, -1
        """)
    def mask(s, diag):
        for r in range(16):
            j0 = 8*(r >> 2) + (r & 3)
            lo = (1 << j0) - 1; hi = (1 << (j0 + 4)) - 1
            if not diag: lo ^= 0xffffffff; hi ^= 0xffffffff
            a.e(f"s_mov_b32 exec_lo, 0x{lo:x}")
            a.e(f"s_mov_b32 exec_hi, 0x{hi:x}")
            a.e(f"v_mov_b32 v{S[s]+r}, s36")
        a.e("s_mov_b64 exec, -1")

    a.c("---- B prologue: reference max from key tile 0")
    a.e("s_waitcnt vmcnt(13)")
    a.e("s_barrier")
    readK(0, 0)
    a.e(f"s_mul_i32 s3, s19, 2560")
    a.e("s_waitcnt lgkmcnt(0)")
    for m in qk(0, 0, 0) + qk(1, 0, 1): a.e(m)
    a.e(f"v_add_u32 v{vK1a}, s3, v{vK1a}")
    a.e(f"v_add_u32 v{vK2a}, s3, v{vK2a}")
    a.e(f"v_add_u32 v{vVa}, s3, v{vVa}")
    readK(0, 0); readK(1, 5120); readV(0, 0)
    a.e("s_nop 3")
    maxtree(vM, 0); crossmax(vM); patchQ(0, vM)
    maxtree(vM, 1); crossmax(vM); patchQ(1, vM)
    a.e("s_waitcnt lgkmcnt(0)")
    for m in qk(0, 0, 0): a.e(m)
    a.e("s_mov_b32 s35, 0")
    a.e("s_nop 9")
    loop = a.newlabel("bloop"); sync = a.newlabel("bsync"); back = a.newlabel("bback")
    NIT = 32 // U; PER = 8 // U
    a.e(".p2align 4")
    a.label(loop)
    for t in range(U):
        p = t & 1
        m = qk(1, p, 1) + pv(1, 1 - p, 1)
        for g in range(4):
            a.e(m[g]); expgrp(0, 0, g)
        m = qk(0, 1 - p, 0) + pv(0, p, 0)
        a.e("s_waitcnt lgkmcnt(0)")
        for g in range(4):
            a.e(m[g])
            if g == 0:
                a.e(f"ds_read_b128 {vr(K1[p],4)}, v{vK1a} offset:{(t+2)*5120}")
                a.e(f"s_mov_b64 exec, {EXLO}")
                a.e(f"ds_read_b64 {vr(K2[p],2)}, v{vK2a} offset:{(t+2)*5120}")
                a.e(f"s_mov_b64 exec, {EXV}")
                a.e(f"ds_read_b128 {vr(V[1-p],4)}, v{vVa} offset:{(t+1)*5120}")
                a.e(f"ds_read_b128 {vr(V[1-p]+4,4)}, v{vVa} offset:{(t+1)*5120+640}")
                a.e(f"s_mov_b64 exec, -1")
            expgrp(1, 1, g)
    a.e(f"""
    v_add_u32 v{vK1a}, {U*5120}, v{vK1a}
    v_add_u32 v{vK2a}, {U*5120}, v{vK2a}
    v_add_u32 v{vVa}, {U*5120}, v{vVa}
    s_add_u32 s35, s35, 1
    """)
    if PER > 1:
        a.e(f"s_and_b32 s3, s35, {PER-1}")
        a.e(f"s_cbranch_scc1 {loop}")
    l2 = a.newlabel("s2"); l3 = a.newlabel("s3"); bdone = a.newlabel("bdone")
    a.e(f"""
    s_cmp_eq_u32 s35, {2*PER}
    s_cbranch_scc1 {l2}
    s_cmp_eq_u32 s35, {3*PER}
    s_cbranch_scc1 {l3}
    s_cmp_eq_u32 s35, {4*PER}
    s_cbranch_scc1 {bdone}
    s_waitcnt vmcnt(8)
    s_barrier
    s_branch {loop}
    {l3}:
    s_waitcnt vmcnt(7)
    s_barrier
    s_branch {loop}
    {l2}:
    s_waitcnt vmcnt(3)
    s_barrier
    """)
    a.c("A-branch loads: Q frags + 16 KV records into LDS[0,40960)")
    a.e(f"""
    s_lshl_b32 s38, s17, 6
    s_add_u32 s39, s38, s28
    s_mul_i32 s39, s39, 1280
    s_add_u32 s39, s39, {Q_OFF}
    s_lshl_b32 s40, s18, 3
    s_sub_u32 s40, s40, 8
    s_max_i32 s40, s40, 0
    s_add_u32 s41, s38, s40
    s_mul_i32 s41, s41, 2560
    s_add_u32 s41, s41, s33
    s_mov_b32 m0, s33
    buffer_load_dwordx4 {vr(Q1[2],4)}, v{vL16}, s[4:7], s39 offen
    buffer_load_dwordx2 {vr(Q2[2],2)}, v{vQ2o}, s[4:7], s39 offen
    """)
    for t in range(5):
        a.e(f"buffer_load_dwordx4 v{vL16}, s[4:7], s41 offen lds")
        if t < 4:
            a.e("s_add_u32 m0, m0, 8192")
            a.e("s_add_u32 s41, s41, 8192")
    a.e(f"s_branch {loop}")
    a.label(bdone)
    for m in pv(1, 1, 1): a.e(m)
    a.c("exchange partial O between key halves")
    a.e(f"""
    s_lshl_b32 s3, s16, 12
    s_add_u32 s3, s3, 40960
    v_add_u32 v{vT0}, s3, v{vL16}
    v_xor_b32 v{vT1}, 16384, v{vT0}
    """)
    a.L.pop(); a.L.pop()
    a.e(f"""
    v_add_u32 v{vT0}, s3, v{vL16}
    s_xor_b32 s3, s16, 4
    s_lshl_b32 s3, s3, 12
    s_add_u32 s3, s3, 40960
    v_add_u32 v{vT1}, s3, v{vL16}
    s_waitcnt lgkmcnt(0)
    s_nop 7
    """)
    for q in range(4):
        a.e(f"ds_write_b128 v{vT0}, {vr(O[1]+4*q,4)} offset:{1024*q}")
    a.e("s_waitcnt vmcnt(0) lgkmcnt(0)")
    a.e("s_barrier")
    for q in range(4):
        a.e(f"ds_read_b128 {vr(S[1]+4*q,4)}, v{vT1} offset:{1024*q}")
    a.c("A addressing: local tile of diag = T - chunk_start")
    a.e(f"""
    s_sub_u32 s42, s28, s40
    s_mul_i32 s42, s42, 2560
    v_add_u32 v{vK1a}, s42, v{vL16}
    v_and_b32 v{vT0}, 31, v{vL}
    v_lshlrev_b32 v{vK2a}, 3, v{vT0}
    v_add_u32 v{vK2a}, 1024, v{vK2a}
    v_add_u32 v{vK2a}, s42, v{vK2a}
    v_lshrrev_b32 v{vT1}, 5, v{vL}
    v_mul_u32_u24 v{vVa}, 320, v{vT1}
    v_lshl_add_u32 v{vVa}, v{vT0}, 4, v{vVa}
    v_add_u32 v{vVa}, 1280, v{vVa}
    v_add_u32 v{vVa}, s42, v{vVa}
    s_waitcnt lgkmcnt(0)
    """)
    for r in range(13):
        a.e(f"v_add_f32 v{O[0]+r}, v{O[0]+r}, v{S[1]+r}")

    slow = []
    def finalize(br, sT, q):
        sl = a.newlabel("slow"); ret = a.newlabel("ret")
        o = O[0]
        a.e(f"v_add_f32 v{vT0}, abs(v{o}), abs(v{o+1})")
        for r in range(2, 12): a.e(f"v_add_f32 v{vT0}, v{vT0}, abs(v{o+r})")
        a.e(f"""
        s_mov_b32 s44, 0x7b800000
        s_mov_b32 s45, 0x35800000
        s_mov_b32 s46, 0x7f800000
        v_cmp_nlt_f32 s[48:49], v{o+12}, s44
        v_cmp_ngt_f32 s[50:51], v{o+12}, s45
        v_cmp_nlt_f32 s[52:53], v{vT0}, s46
        s_or_b64 s[48:49], s[48:49], s[50:51]
        s_or_b64 s[48:49], s[48:49], s[52:53]
        s_cbranch_scc1 {sl}
        {ret}:
        v_rcp_f32 v{vT0}, v{o+12}
        s_mul_i32 s44, s{sT}, 40960
        s_add_u32 s44, s44, {O_OFF + br*2621440}
        s_lshl_b32 s45, s17, 9
        s_add_u32 s45, s45, s44
        s_lshr_b32 s46, s17, 3
        s_lshl_b32 s46, s46, 10
        s_add_u32 s46, s46, s44
        s_and_b32 s47, s17, 3
        s_lshl_b32 s47, s47, 8
        s_add_u32 s46, s46, s47
        s_bfe_u32 s47, s17, 0x10002
        s_lshl_b32 s47, s47, 3
        s_add_u32 s46, s46, s47
        s_add_u32 s46, s46, 16384
        """)
        for r in range(12): a.e(f"v_mul_f32 v{o+r}, v{vT0}, v{o+r}")
        for e in range(6): a.e(f"v_cvt_pk_bf16_f32 v{P[0]+e}, v{o+2*e}, v{o+2*e+1}")
        a.e(f"""
        buffer_store_dwordx4 {vr(P[0],4)}, v{vOo}, s[4:7], s45 offen
        s_mov_b64 exec, {EXLO}
        buffer_store_dwordx2 {vr(P[0]+4,2)}, v{vOo}, s[4:7], s46 offen
        s_mov_b64 exec, -1
        """)
        slow.append((sl, ret, br, sT, q))
    finalize(1, 26, 0)

    a.c("---- A branch")
    readK(0, 0)
    a.e(f"""
    s_cmp_eq_u32 s28, 0
    s_cselect_b32 s3, 0, -2560
    v_add_u32 v{vT0}, s3, v{vK1a}
    v_add_u32 v{vT1}, s3, v{vK2a}
    ds_read_b128 {vr(K1[1],4)}, v{vT0}
    s_mov_b64 exec, {EXLO}
    ds_read_b64 {vr(K2[1],2)}, v{vT1}
    s_mov_b64 exec, -1
    """)
    readV(0, 0)
    for r in range(16): a.e(f"v_mov_b32 v{O[0]+r}, 0")
    a.e("s_waitcnt lgkmcnt(2)")
    for m in qk(0, 0, 2) + qk(1, 1, 2): a.e(m)
    a.e("s_min_u32 s43, s28, 8")
    a.e("s_mov_b32 s35, 0")
    a.e("s_nop 8")
    mask(0, True)
    maxtree(vM, 0)
    skip = a.newlabel("noprev")
    a.e(f"s_cmp_eq_u32 s28, 0\ns_cbranch_scc1 {skip}")
    maxtree(vM, 1, first=False)
    a.label(skip)
    crossmax(vM); patchQ(2, vM)
    aloop = a.newlabel("aloop"); am0 = a.newlabel("am0"); am8 = a.newlabel("am8"); amb = a.newlabel("amb")
    a.e("s_nop 0")
    a.e(".p2align 4")
    a.label(aloop)
    a.e("s_waitcnt lgkmcnt(2)")
    for m in qk(0, 0, 2): a.e(m)
    a.e(f"v_add_u32 v{vK1a}, -2560, v{vK1a}")
    a.e(f"v_add_u32 v{vK2a}, -2560, v{vK2a}")
    readK(0, 0)
    a.e(f"v_add_u32 v{vVa}, -2560, v{vVa}")
    a.e(f"""
    s_nop 1
    s_cmp_eq_u32 s35, 0
    s_cbranch_scc1 {am0}
    s_cmp_eq_u32 s35, 8
    s_cbranch_scc1 {am8}
    {amb}:
    """)
    m = pv(0, 0, 0)
    expgrp(0, 0, 0); expgrp(0, 0, 1)
    a.e("s_waitcnt lgkmcnt(2)")
    for r in range(8, 10): a.e(f"v_exp_f32 v{S[0]+r}, v{S[0]+r}")
    a.e(m[0])
    for r in range(10, 12): a.e(f"v_exp_f32 v{S[0]+r}, v{S[0]+r}")
    for e in range(4, 6): a.e(f"v_cvt_pk_bf16_f32 v{P[0]+e}, v{S[0]+2*e}, v{S[0]+2*e+1}")
    expgrp(0, 0, 3)
    a.e(f"s_add_u32 s35, s35, 1")
    a.e(f"s_cmp_le_u32 s35, s43")
    a.e(m[1])
    readV(0, 0)
    a.e(f"s_cbranch_scc1 {aloop}")
    a.e("s_waitcnt lgkmcnt(0)")
    a.e("s_nop 7")
    finalize(0, 28, 2)
    a.label(end)
    a.e("s_endpgm")
    a.label(am0)
    a.e("s_nop 1")
    mask(0, True)
    a.e(f"s_branch {amb}")
    a.label(am8)
    mask(0, False)
    a.e(f"s_branch {amb}")

    for (sl, ret, br, sT, q) in slow:
        a.label(sl)
        a.c("exact two-pass softmax with the true row max")
        a.e(f"s_mov_b64 exec, {EXHI}")
        a.e(f"v_mov_b32 v{Q2[q]}, 0")
        a.e(f"v_mov_b32 v{Q2[q]+1}, 0")
        a.e(f"s_mov_b64 exec, -1")
        if br == 1:
            a.e(f"""
            s_mov_b32 s54, 0
            s_mov_b32 s55, 63
            s_movk_i32 s56, 2048
            v_mov_b32 v{vLo}, 0
            """)
        else:
            a.e(f"""
            s_sub_u32 s54, s{sT}, 8
            s_max_i32 s54, s54, 0
            s_mov_b32 s55, s{sT}
            s_movk_i32 s56, 256
            s_lshl_b32 s57, s{sT}, 5
            s_sub_u32 s57, s57, 255
            v_and_b32 v{vLo}, 31, v{vL}
            v_add_u32 v{vLo}, s57, v{vLo}
            """)
        a.e(f"""
        v_lshrrev_b32 v{vT1}, 5, v{vL}
        v_lshlrev_b32 v{vT2}, 2, v{vT1}
        v_sub_u32 v{vLo}, v{vLo}, v{vT2}
        v_and_b32 v{vT0}, 31, v{vL}
        v_mul_u32_u24 v{S[1]}, 320, v{vT1}
        v_lshl_add_u32 v{S[1]}, v{vT0}, 4, v{S[1]}
        v_lshlrev_b32 v{S[1]+1}, 3, v{vT0}
        v_mov_b32 v{vM}, s36
        v_mov_b32 v{S[1]+2}, s36
        s_add_u32 s58, s17, {br*32}
        s_lshl_b32 s58, s58, 6
        s_mov_b32 s59, 0
        """)
        for r in range(16): a.e(f"v_mov_b32 v{O[0]+r}, 0")
        pl = a.newlabel("pass"); tl = a.newlabel("tile"); p2 = a.newlabel("p2"); nx = a.newlabel("nx")
        a.label(pl)
        a.e("s_mov_b32 s60, s54")
        a.label(tl)
        a.e(f"""
        s_add_u32 s61, s58, s60
        s_mul_i32 s61, s61, 2560
        buffer_load_dwordx4 {vr(K1[0],4)}, v{vL16}, s[4:7], s61 offen
        buffer_load_dwordx2 {vr(K2[0],2)}, v{S[1]+1}, s[4:7], s61 offen offset:1024
        s_mov_b64 exec, {EXV}
        buffer_load_dwordx4 {vr(V[0],4)}, v{S[1]}, s[4:7], s61 offen offset:1280
        buffer_load_dwordx4 {vr(V[0]+4,4)}, v{S[1]}, s[4:7], s61 offen offset:1920
        s_mov_b64 exec, -1
        s_lshl_b32 s62, s60, 5
        v_sub_u32 v{vT0}, s62, v{vLo}
        s_waitcnt vmcnt(0)
        """)
        for m in qk(0, 0, q): a.e(m)
        a.e("s_nop 15")
        for r in range(16):
            j0 = 8*(r >> 2) + (r & 3)
            a.e(f"v_add_u32 v{vT1}, {j0}, v{vT0}")
            a.e(f"v_cmp_gt_u32 vcc, s56, v{vT1}")
            a.e("s_nop 1")
            a.e(f"v_cndmask_b32 v{S[0]+r}, v{S[1]+2}, v{S[0]+r}, vcc")
        a.e(f"s_cmp_eq_u32 s59, 1\ns_cbranch_scc1 {p2}")
        maxtree(vM, 0, first=False)
        a.e(f"s_branch {nx}")
        a.label(p2)
        for r in range(16): a.e(f"v_sub_f32 v{S[0]+r}, v{S[0]+r}, v{vM}")
        for g in range(4): expgrp(0, 0, g)
        a.e("s_nop 1")
        for m in pv(0, 0, 0): a.e(m)
        a.e("s_nop 7")
        a.label(nx)
        a.e(f"""
        s_add_u32 s60, s60, 1
        s_cmp_le_u32 s60, s55
        s_cbranch_scc1 {tl}
        s_nop 15
        s_cmp_eq_u32 s59, 1
        """)
        dn = a.newlabel("dn")
        a.e(f"s_cbranch_scc1 {dn}")
        crossmax(vM)
        a.e(f"s_mov_b32 s59, 1\ns_branch {pl}")
        a.label(dn)
        a.c("restore the constant half1 lanes of K2[0]")
        a.e(f"v_mov_b32 v{K2[0]}, {ONES}")
        a.e(f"v_mov_b32 v{K2[0]+1}, {ONES}")
        a.e(f"s_branch {ret}")
    return nv
```

```python
from asmlib import *
from k1 import KV_OFF, Q_OFF, O_OFF, WS_SIZE, f32bits
M16 = "v_mfma_f32_16x16x32_bf16"
K3_LDS = 104 * 1024

def gen_k3(a, name="proj_kernel"):
    R = Regs(1)
    vL = R.alloc("L"); vT0 = R.alloc("t0"); vT1 = R.alloc("t1"); vT2 = R.alloc("t2"); vT3 = R.alloc("t3")
    vL16 = R.alloc("l16")
    vWo = R.alloc("wo", 5)
    vA = R.alloc("a", 4)
    OF = R.alloc("of", 80, 4)
    WF = [R.alloc(f"wf{b}", 20, 4) for b in range(2)]
    ACC = R.alloc("acc", 20, 4)
    nv = R.n
    end = f"{name}_end"
    a.e(f".p2align 8\n.globl {name}\n.type {name},@function\n{name}:")
    a.e(f"""
    s_cmp_ge_u32 s2, 256
    s_cbranch_scc1 {end}
    s_load_dwordx2 s[24:25], s[0:1], 16
    s_load_dwordx2 s[26:27], s[0:1], 40
    s_load_dwordx2 s[12:13], s[0:1], 48
    s_load_dwordx2 s[4:5], s[0:1], 64
    v_lshrrev_b32 v{vT0}, 6, v0
    v_and_b32 v{vL}, 63, v0
    s_and_b32 s3, s2, 7
    v_readfirstlane_b32 s16, v{vT0}
    s_lshr_b32 s32, s2, 3
    s_lshr_b32 s19, s3, 2
    s_and_b32 s17, s3, 3
    s_lshl_b32 s17, s17, 2
    s_and_b32 s33, s32, 3
    s_add_u32 s17, s17, s33
    s_lshr_b32 s18, s32, 2
    v_lshlrev_b32 v{vL16}, 4, v{vL}
    """)
    a.c("s16=wave s17=token block(128) s18=col block(80) s19=br")
    m10 = magic(10, 4096)
    a.e(f"""
    s_mov_b32 s34, {m10}
    s_lshl_b32 s33, s16, 6
    s_mul_i32 s36, s18, 160
    s_movk_i32 s37, 1120
    """)
    for t in range(5):
        a.e(f"""
        v_add_u32 v{vT0}, s33, v{vL}
        v_add_u32 v{vT0}, {512*t}, v{vT0}
        v_mul_hi_u32 v{vT1}, s34, v{vT0}
        v_lshlrev_b32 v{vT0}, 4, v{vT0}
        v_mad_u32_u24 v{vT0}, v{vT1}, s37, v{vT0}
        v_add_u32 v{vWo+t}, s36, v{vT0}
        """)
    a.e(f"""
    s_lshl_b32 s38, s17, 3
    s_add_u32 s38, s38, s16
    s_mul_i32 s39, s38, 20480
    s_mul_i32 s40, s19, 2621440
    s_add_u32 s39, s39, s40
    s_add_u32 s39, s39, {O_OFF}
    s_lshl_b32 s41, s16, 10
    s_mov_b32 m0, s41
    s_waitcnt lgkmcnt(0)
    s_cmp_eq_u32 s19, 0
    s_cselect_b64 s[8:9], s[24:25], s[26:27]
    s_mov_b32 s10, 819200
    s_mov_b32 s11, 0x20000
    s_mov_b32 s6, {WS_SIZE}
    s_mov_b32 s7, 0x20000
    s_mov_b32 s14, 5242880
    s_mov_b32 s15, 0x20000
    s_mov_b32 s42, 0
    """)
    oj = 0
    def oload(n):
        nonlocal oj
        for _ in range(n):
            if oj < 20:
                if oj % 4 == 0 and oj > 0:
                    a.e("s_add_u32 s39, s39, 4096")
                a.e(f"buffer_load_dwordx4 {vr(OF+4*oj,4)}, v{vL16}, s[4:7], s39 offen offset:{(oj%4)*1024}")
                oj += 1
    for t in range(13):
        a.e(f"buffer_load_dwordx4 v{vWo+t%5}, s[8:11], s42 offen lds")
        a.e("s_add_u32 m0, m0, 8192")
        if t % 5 == 4: a.e(f"s_add_u32 s42, s42, {256*1280}")
        oload(2 if t % 2 == 0 else 1)
    assert oj == 20
    a.e(f"""
    v_lshrrev_b32 v{vT0}, 5, v{vL}
    v_mul_u32_u24 v{vT0}, 20, v{vT0}
    v_bfe_u32 v{vT1}, v{vL}, 2, 3
    v_add_u32 v{vT0}, v{vT0}, v{vT1}
    v_mul_u32_u24 v{vT0}, 160, v{vT0}
    v_and_b32 v{vT1}, 3, v{vL}
    v_mul_u32_u24 v{vT1}, 40, v{vT1}
    v_add_u32 v{vA}, v{vT0}, v{vT1}
    v_add_u32 v{vA+1}, 51200, v{vA}
    v_lshrrev_b32 v{vT0}, 4, v{vL}
    v_mul_u32_u24 v{vT0}, 20, v{vT0}
    v_bfe_u32 v{vT2}, v{vL}, 2, 2
    v_add3_u32 v{vT0}, v{vT0}, v{vT2}, 16
    v_mul_u32_u24 v{vT0}, 160, v{vT0}
    v_add_u32 v{vA+2}, v{vT0}, v{vT1}
    v_add_u32 v{vA+3}, 51200, v{vA+2}
    """)
    for r in range(20): a.e(f"v_mov_b32 v{ACC+r}, 0")
    a.c("output address")
    a.e(f"""
    s_lshl_b32 s43, s38, 4
    s_mul_i32 s43, s43, 2560
    s_mul_i32 s44, s19, 1280
    s_add_u32 s43, s43, s44
    s_add_u32 s43, s43, s36
    v_and_b32 v{vT0}, 15, v{vL}
    v_mul_u32_u24 v{vT0}, 2560, v{vT0}
    v_lshrrev_b32 v{vT1}, 4, v{vL}
    v_mul_u32_u24 v{vT1}, 40, v{vT1}
    v_add_u32 v{vT3}, v{vT0}, v{vT1}
    s_waitcnt vmcnt(0)
    s_barrier
    """)
    def reads(j, b):
        for t in range(5):
            if j < 16:
                ad = vA + (j >> 3); o1 = (j & 7) * 6400 + 8*t; o2 = o1 + 1280
            else:
                jj = j - 16
                ad = vA + 2 + (jj >> 1); o1 = (jj & 1) * 25600 + 8*t; o2 = o1 + 12800
            a.e(f"ds_read_b64_tr_b16 {vr(WF[b]+4*t,2)}, v{ad} offset:{o1}")
            a.e(f"ds_read_b64_tr_b16 {vr(WF[b]+4*t+2,2)}, v{ad} offset:{o2}")
    reads(0, 0)
    for j in range(20):
        if j < 19:
            reads(j + 1, (j + 1) & 1)
            a.e("s_waitcnt lgkmcnt(10)")
        else:
            a.e("s_waitcnt lgkmcnt(0)")
        for t in range(5):
            a.e(f"{M16} {vr(ACC+4*t,4)}, {vr(WF[j&1]+4*t,4)}, {vr(OF+4*j,4)}, {vr(ACC+4*t,4)}")
    a.e("s_nop 7")
    for e in range(10):
        a.e(f"v_cvt_pk_bf16_f32 v{WF[0]+e}, v{ACC+2*e}, v{ACC+2*e+1}")
    a.e(f"""
    buffer_store_dwordx4 {vr(WF[0],4)}, v{vT3}, s[12:15], s43 offen
    buffer_store_dwordx4 {vr(WF[0]+4,4)}, v{vT3}, s[12:15], s43 offen offset:16
    buffer_store_dwordx2 {vr(WF[0]+8,2)}, v{vT3}, s[12:15], s43 offen offset:32
    """)
    a.label(end)
    a.e("s_endpgm")
    return nv
```

```python
import sys
from asmlib import *
import k1, k2, k3
NAME = "concat_heads__sliding_block__softmax_full_mha__prompt"
HEAD = open(f"cdna_kernels/{NAME}.s.ref").read().split("; Override")[0]
def build(out, U=4):
    a = Asm()
    n1 = k1.gen_k1(a); n2 = k2.gen_k2(a, U=U); n3 = k3.gen_k3(a)
    s = HEAD
    s += f"; @launch kernel=qkv_kernel grid=(256,1,1) block=(512,1,1) lds={k1.K1_LDS}\n"
    s += f"; @launch kernel=attn_kernel grid=(256,1,1) block=(512,1,1) lds={k2.K2_LDS}\n"
    s += f"; @launch kernel=proj_kernel grid=(256,1,1) block=(512,1,1) lds={k3.K3_LDS}\n"
    s += '.amdgcn_target "amdgcn-amd-amdhsa--gfx950"\n.text\n'
    s += a.text()
    s += '.section .rodata,"a"\n'
    for nm, nv in (("qkv_kernel", n1), ("attn_kernel", n2), ("proj_kernel", n3)):
        s += ".p2align 6\n" + kd(nm, nv)
    open(out, "w").write(s)
    print("vgprs", n1, n2, n3)
if __name__ == "__main__":
    build(sys.argv[1] if len(sys.argv) > 1 else f"cdna_kernels/{NAME}.s")
```

```python
class Asm:
    def __init__(self):
        self.L = []
        self.uid = 0
    def e(self, s):
        for line in s.split("\n"):
            line = line.strip()
            if not line: continue
            if line.endswith(":") or line.startswith("."):
                self.L.append(line)
            else:
                self.L.append("    " + line)
    def c(self, s):
        self.L.append("    ; " + s)
    def label(self, name):
        self.L.append(name + ":")
    def newlabel(self, base):
        self.uid += 1
        return f"L_{base}_{self.uid}"
    def text(self):
        return "\n".join(self.L) + "\n"

class Regs:
    def __init__(self, start=0):
        self.n = start
        self.names = {}
    def alloc(self, name, cnt=1, align=1):
        if cnt >= 2 and align == 1: align = 2
        self.n = (self.n + align - 1) // align * align
        r = self.n
        self.n += cnt
        self.names[name] = (r, cnt)
        return r

def vr(base, cnt):
    return f"v{base}" if cnt == 1 else f"v[{base}:{base+cnt-1}]"
def sr(base, cnt):
    return f"s{base}" if cnt == 1 else f"s[{base}:{base+cnt-1}]"

def magic(d, maxn):
    m = (2**32 + d - 1) // d
    for n in range(maxn + 1):
        assert (n * m) >> 32 == n // d
    return m

def kd(name, vgpr, sgpr=100, accum=None):
    acc = accum if accum is not None else (vgpr + 3) // 4 * 4
    return f""".amdhsa_kernel {name}
  .amdhsa_next_free_vgpr {vgpr}
  .amdhsa_next_free_sgpr {sgpr}
  .amdhsa_accum_offset {acc}
  .amdhsa_group_segment_fixed_size 0
  .amdhsa_kernarg_size 72
  .amdhsa_user_sgpr_count 2
  .amdhsa_user_sgpr_kernarg_segment_ptr 1
  .amdhsa_system_sgpr_workgroup_id_x 1
.end_amdhsa_kernel
"""


STAMP_OFF = 32 * 1024 * 1024
class Stamp:
    def __init__(self, a, on, kid, srd, v0=254):
        self.a = a; self.on = on; self.kid = kid; self.srd = srd; self.v = v0
    def init(self):
        if not self.on: return
        self.a.e(f"v_mov_b32 v{self.v}, 0\nv_mov_b32 v{self.v+1}, 0")
    def __call__(self, i):
        if not self.on: return
        self.a.e(f"""
        s_memrealtime s[88:89]
        s_memtime s[90:91]
        s_waitcnt lgkmcnt(0)
        v_writelane_b32 v{self.v}, s88, {i}
        v_writelane_b32 v{self.v+1}, s90, {i}
        """)
        if i == 0: self.a.e("s_mov_b32 s87, s90")
    def flush(self, wave_sgpr=16, n=16):
        if not self.on: return
        self.a.e(f"""
        s_mov_b64 exec, 0xffff
        s_lshl_b32 s88, s2, 4
        s_add_u32 s88, s88, s{wave_sgpr}
        s_lshl_b32 s88, s88, 7
        s_add_u32 s88, s88, {STAMP_OFF + self.kid * 1024 * 1024}
        s_mov_b32 s{self.srd+2}, 0x10000000
        v_and_b32 v1, 63, v0
        v_lshlrev_b32 v1, 3, v1
        buffer_store_dwordx2 v[{self.v}:{self.v+1}], v1, s[{self.srd}:{self.srd+3}], s88 offen
        """)
```

```python
from asmlib import *
import struct, math
KV_OFF = 0
Q_OFF = 10485760
O_OFF = 15728640
FLAG_OFF = 20971520
WS_SIZE = FLAG_OFF + 32768
QSCALE = math.log2(math.e) / math.sqrt(20.0)
def f32bits(x): return struct.unpack("<I", struct.pack("<f", x))[0]
M16 = "v_mfma_f32_16x16x32_bf16"
MF = "v_mfma_f32_32x32x16_bf16"
MF8 = "v_mfma_f32_32x32x8_bf16"
STAGE = 32768
RING0 = 65536
RING_END = RING0 + 3 * STAGE
QLDS = RING0 + 2 * STAGE
XCH = 131072
WOL = 61440
C2_OFF = FLAG_OFF + 24576
F1_LDS = 163840
ONES = 0x3f803f80
WS = "s[12:15]"
SPIN_MAX = 200000
IDLE_SLEEP = 2

def gen_main(a, name="main_kernel", diag=False, prio=(3,3,3,3,2,2,1,0), prioA=(3,3,2,1,0,3,2,1,0), rot=False, wotouch=True, exp='', spf=10, PUB=12, atouch=0):
    st = Stamp(a, diag, 0, 12)
    sc = " sc1"
    R = Regs(1)
    vL = R.alloc("L"); vT0 = R.alloc("t0"); vT1 = R.alloc("t1"); vT2 = R.alloc("t2"); vT3 = R.alloc("t3")
    vL16 = R.alloc("l16")
    vTr = R.alloc("tr")
    base = R.n
    vXo = R.alloc("Xo", 4); vWo = R.alloc("Wo", 4)
    vXa = R.alloc("Xa", 2); vWa = R.alloc("Wa", 4); vEo = R.alloc("Eo", 4)
    vPo = R.alloc("poll", 4, 4)
    XF = [R.alloc(f"xf{b}", 16, 4) for b in range(2)]
    WF = [R.alloc(f"wf{b}", 16, 4) for b in range(2)]
    ACC = R.alloc("acc", 64, 4)
    EP = R.alloc("ep", 32, 4)
    n1 = R.n
    R.n = base
    vQ1o = R.alloc("q1o"); vQ2o = R.alloc("q2o"); vVo = R.alloc("vo")
    vKa = R.alloc("ka"); vVa = R.alloc("va"); vOo = R.alloc("oo"); vM = R.alloc("m"); vLo = R.alloc("lo")
    vP4 = R.alloc("p4", 4, 4)
    Q1 = [R.alloc(f"q1{i}", 4, 4) for i in range(3)]
    Q2 = [R.alloc(f"q2{i}", 2, 2) for i in range(3)]
    K2 = [R.alloc(f"k2{i}", 2, 2) for i in range(2)]
    K1 = [R.alloc(f"k1{i}", 4, 4) for i in range(2)]
    V = [R.alloc(f"v{i}", 8, 4) for i in range(2)]
    P = [R.alloc(f"p{i}", 8, 4) for i in range(2)]
    S = [R.alloc(f"s{i}", 16, 4) for i in range(2)]
    O = [R.alloc(f"o{i}", 16, 4) for i in range(2)]
    vWd = R.alloc("wd", 5)
    vPa = R.alloc("pa", 2)
    vOut = R.alloc("out"); vSig = R.alloc("sig")
    n2 = R.n
    R.n = Q1[0]
    OF = R.alloc("of", 40, 4)
    PW = [R.alloc(f"pw{b}", 20, 4) for b in range(2)]
    PA = R.alloc("pacc", 20, 4)
    assert R.n <= P[0] + 200 and R.n <= vWd
    nv = max(n1, n2) if not diag else 256
    end = f"{name}_end"; comp = f"{name}_comp"; attn = f"{name}_attn"
    a.e(f".p2align 8\n.globl {name}\n.type {name},@function\n{name}:")
    a.e(f"""
    s_cmp_ge_u32 s2, 256
    s_cbranch_scc1 {end}
    s_load_dwordx2 s[4:5], s[0:1], 24
    s_load_dwordx2 s[8:9], s[0:1], 32
    s_load_dwordx2 s[28:29], s[0:1], 0
    s_load_dwordx2 s[56:57], s[0:1], 8
    s_load_dwordx2 s[12:13], s[0:1], 64
    s_load_dwordx2 s[60:61], s[0:1], 56
    v_lshrrev_b32 v{vT0}, 6, v0
    v_and_b32 v{vL}, 63, v0
    s_and_b32 s3, s2, 7
    v_readfirstlane_b32 s16, v{vT0}
    s_lshr_b32 s32, s2, 3
    s_and_b32 s33, s3, 1
    s_lshr_b32 s34, s3, 1
    s_and_b32 s17, s32, 3
    s_lshr_b32 s18, s32, 2
    s_lshl_b32 s35, s33, 3
    s_add_u32 s18, s18, s35
    s_lshl_b32 s35, s33, 1
    s_add_u32 s35, s35, s17
    s_cmp_ge_u32 s32, 28
    s_cselect_b32 s18, 7, s18
    s_cselect_b32 s17, s35, s17
    s_lshl_b32 s34, s34, 2
    s_add_u32 s17, s17, s34
    s_mov_b32 s6, 2621440
    s_mov_b32 s7, 0x20000
    s_mov_b32 s10, 2457600
    s_mov_b32 s11, 0x20000
    s_mov_b32 s30, 2621440
    s_mov_b32 s31, 0x20000
    s_mov_b32 s58, 2457600
    s_mov_b32 s59, 0x20000
    s_mov_b32 s14, {WS_SIZE}
    s_mov_b32 s15, 0x20000
    s_mov_b32 s62, 256
    s_mov_b32 s63, 0x20000
    v_lshlrev_b32 v{vL16}, 4, v{vL}
    s_mul_hi_u32 s35, s18, {magic(5, 16)}
    s_mul_i32 s36, s35, 5
    s_sub_u32 s36, s18, s36
    s_lshl_b32 s36, s36, 7
    s_mul_hi_u32 s37, s36, {magic(20, 1024)}
    s_add_u32 s36, s36, 127
    s_mul_hi_u32 s36, s36, {magic(20, 1024)}
    s_sub_u32 s36, s36, s37
    s_add_u32 s36, s36, 1
    s_bfm_b64 s[94:95], s36, 0
    s_lshl_b32 s35, s35, 5
    s_add_u32 s35, s35, s37
    s_lshl_b32 s55, s35, 7
    s_add_u32 s55, s55, {FLAG_OFF}
    s_lshl_b32 s35, s3, 2
    s_and_b32 s36, s32, 3
    s_add_u32 s35, s35, s36
    s_mul_i32 s36, s35, 20
    s_add_u32 s37, s36, 19
    s_lshr_b32 s36, s36, 7
    s_lshr_b32 s37, s37, 7
    s_sub_u32 s36, s37, s36
    s_add_u32 s36, s36, 1
    s_lshl_b32 s96, s36, 4
    s_lshl_b32 s97, s35, 7
    s_add_u32 s97, s97, {FLAG_OFF}
    """)
    a.c("s16=wave s17=rb s18=cb s32=idx s33=sub s34=4*pair s55=first counter this tile feeds (branch A; +12288 for B), s[94:95]=lanes of the heads it feeds")
    a.c("s96=arrivals expected per counter of this workgroup's head, s97=that head's first counter (branch A)")
    a.c("SRDs: s[4:7] X, s[8:11] W (current phase), s[28:31] A_x, s[56:59] A_w, s[12:15] ws, s[60:63] debug")
    a.e("s_mov_b32 s92, 0")
    st.init(); st(0)
    def bound(out):
        a.e(f"s_add_u32 s92, s92, 1\ns_cmp_gt_u32 s92, {SPIN_MAX}\ns_cbranch_scc1 {out}")
    a.e(f"s_cmp_ge_u32 s16, 4\ns_cbranch_scc1 {comp}")
    a.c("================ loader waves")
    a.e("s_setprio 3")
    a.e(f"""
    s_lshl_b32 s37, s32, 2
    s_add_u32 s37, s37, s16
    s_mul_i32 s48, s37, {5*3840}
    s_mul_i32 s39, s33, 1792
    s_add_u32 s48, s48, s39
    s_add_u32 s49, s48, {4*3840}
    s_mul_i32 s50, s34, {128*1280}
    s_mul_i32 s41, s37, {40*128}
    s_add_u32 s50, s50, s41
    v_lshrrev_b32 v{vXa}, 4, v{vL}
    v_mul_u32_u24 v{vXa}, 3840, v{vXa}
    v_and_b32 v{vT1}, 15, v{vL}
    v_lshl_add_u32 v{vXa}, v{vT1}, 7, v{vXa}
    v_lshlrev_b32 v{vXa+1}, 7, v{vL}
    v_mov_b32 v{vEo}, 0
    s_waitcnt lgkmcnt(0)
    """)
    def ltouch(xs, ws):
        a.e(f"""
        buffer_load_dword v{vWa}, v{vXa}, s[{ws}:{ws+3}], s48 offen
        s_mov_b32 exec_hi, 0xff
        buffer_load_dword v{vWa+1}, v{vXa+1}, s[{xs}:{xs+3}], s50 offen
        s_mov_b64 exec, 0xffff
        buffer_load_dword v{vWa+2}, v{vXa}, s[{ws}:{ws+3}], s49 offen
        s_mov_b64 exec, -1
        """)
    ltouch(4, 8)
    if atouch == 1:
        a.e(f"""
        s_lshl_b32 s37, s2, 2
        s_add_u32 s37, s37, s16
        s_mul_i32 s39, s37, {20*128}
        s_mul_i32 s41, s37, {19*128}
        s_mov_b64 exec, 0xfffff
        buffer_load_dword v{vWa+3}, v{vXa+1}, s[28:31], s39 offen
        s_mov_b64 exec, 0x7ffff
        buffer_load_dword v{vEo+2}, v{vXa+1}, s[56:59], s41 offen
        s_mov_b64 exec, -1
        """)
    if atouch == 2:
        ltouch(28, 56)
    idle = f"{name}_idle"; lpoll = f"{name}_lpoll"; lsecond = f"{name}_lsecond"
    a.c("attention-side constants for the prefetch: s52 = KV source, s53 = Q source")
    a.e(f"""
    s_lshl_b32 s51, s3, 2
    s_and_b32 s35, s32, 3
    s_add_u32 s51, s51, s35
    s_add_u32 s51, s51, 32
    s_lshl_b32 s51, s51, 6
    s_mul_i32 s52, s51, 2560
    s_lshl_b32 s35, s16, 11
    s_add_u32 s52, s52, s35
    s_lshr_b32 s53, s32, 2
    s_lshl_b32 s53, s53, 3
    s_add_u32 s53, s53, s51
    s_mul_i32 s53, s53, 1280
    s_add_u32 s53, s53, {Q_OFF}
    s_mul_i32 s35, s16, 3072
    s_add_u32 s53, s53, s35
    s_add_u32 s54, s97, 12288
    v_lshlrev_b32 v{vEo+1}, 12, v{vL}
    s_cmp_ge_u32 s32, 30
    s_cbranch_scc1 {idle}
    """)
    if rot:
        a.e("s_add_u32 s36, s17, s18\ns_and_b32 s36, s36, 3\ns_mul_i32 s36, s36, 5\ns_add_u32 s36, s36, 1\ns_lshr_b32 s36, s36, 1")
    else:
        a.e("s_mov_b32 s36, 0")
    a.e(f"""
    s_lshl_b32 s20, s36, 7
    s_mul_i32 s21, s36, {64*3840}
    s_lshl_b32 s37, s17, 7
    s_lshl_b32 s38, s16, 5
    s_add_u32 s37, s37, s38
    s_mul_i32 s37, s37, 1280
    s_movk_i32 s39, 1280
    s_cmp_ge_u32 s18, 10
    s_cselect_b32 s38, s39, 2560
    s_cselect_b32 s39, {8*1280}, s39
    v_lshrrev_b32 v{vT0}, 3, v{vL}
    v_mul_u32_u24 v{vT0}, s38, v{vT0}
    v_add_u32 v{vT0}, s37, v{vT0}
    v_and_b32 v{vT1}, 7, v{vL}
    v_lshrrev_b32 v{vT2}, 4, v{vL}
    v_xor_b32 v{vT1}, v{vT1}, v{vT2}
    v_lshl_add_u32 v{vXo}, v{vT1}, 4, v{vT0}
    v_xor_b32 v{vT1}, 4, v{vT1}
    v_lshl_add_u32 v{vXo+1}, v{vT1}, 4, v{vT0}
    v_add_u32 v{vXo+1}, {16*1280}, v{vXo+1}
    v_add_u32 v{vXo+2}, s39, v{vXo}
    v_add_u32 v{vXo+3}, s39, v{vXo+1}
    s_mul_i32 s37, s16, {16*3840}
    s_lshl_b32 s38, s18, 8
    s_add_u32 s37, s37, s38
    v_mul_u32_u24 v{vT0}, 3840, v{vT2}
    v_add_u32 v{vT0}, s37, v{vT0}
    v_and_b32 v{vT1}, 1, v{vL}
    v_lshl_add_u32 v{vT0}, v{vT1}, 4, v{vT0}
    v_bfe_u32 v{vT1}, v{vL}, 1, 3
    v_xor_b32 v{vT1}, v{vT1}, v{vT2}
    v_lshl_add_u32 v{vWo}, v{vT1}, 5, v{vT0}
    v_add_u32 v{vWo+1}, {4*3840}, v{vWo}
    v_xor_b32 v{vT1}, 4, v{vT1}
    v_lshl_add_u32 v{vWo+2}, v{vT1}, 5, v{vT0}
    v_add_u32 v{vWo+2}, {8*3840}, v{vWo+2}
    v_add_u32 v{vWo+3}, {4*3840}, v{vWo+2}
    s_lshl_b32 s40, s16, 12
    s_add_u32 s41, s40, {RING_END}
    s_add_u32 s40, s40, {RING0}
    s_mov_b32 s22, s40
    s_mov_b32 s44, 0
    """)
    a.c("scalar prefetch of branch A towards the memory-side cache: loader id 0..959 -> 3 X lines + 2 W lines per stage")
    m15 = magic(15, 1024)
    a.e(f"""
    s_mul_i32 s45, s3, 30
    s_add_u32 s45, s45, s32
    s_lshl_b32 s45, s45, 2
    s_add_u32 s45, s45, s16
    s_mul_i32 s48, s45, 1280
    s_mul_hi_u32 s49, s45, {m15}
    s_mul_i32 s46, s49, 15
    s_sub_u32 s46, s45, s46
    s_mul_i32 s49, s49, 3840
    s_lshl_b32 s46, s46, 8
    s_add_u32 s49, s49, s46
    """)
    lp = a.newlabel("ld"); nosync = a.newlabel("nosync"); ph2t = a.newlabel("ph2t"); zl = a.newlabel("zl"); zok = a.newlabel("zok"); nopf = a.newlabel("nopf"); sp = a.newlabel("sp"); spb = a.newlabel("spb")
    a.c("s44 = stages issued, s22 = LDS write base")
    a.label(lp)
    for t in range(4):
        a.e(f"s_add_u32 m0, s22, {1024*t}\ns_nop 0")
        a.e(f"buffer_load_dwordx4 v{vXo+t}, s[4:7], s20 offen lds" if 'nodma' not in exp else "s_nop 0")
        a.e(f"s_add_u32 m0, s22, {16384+1024*t}\ns_nop 0")
        a.e(f"buffer_load_dwordx4 v{vWo+t}, s[8:11], s21 offen lds" if 'nodma' not in exp else "s_nop 0")
    a.e(f"""
    s_add_u32 s20, s20, 128
    s_add_u32 s21, s21, {64*3840}
    s_cmp_eq_u32 s20, 1280
    s_cselect_b32 s20, 0, s20
    s_cselect_b32 s21, 0, s21
    s_add_u32 s22, s22, {STAGE}
    s_cmp_eq_u32 s22, s41
    s_cselect_b32 s22, s40, s22
    s_add_u32 s44, s44, 1
    s_cmp_eq_u32 s44, 10
    s_cselect_b64 s[4:5], s[28:29], s[4:5]
    s_cselect_b64 s[8:9], s[56:57], s[8:9]
    s_cmp_lt_u32 s44, 3
    s_cbranch_scc1 {lp}
    s_cmp_gt_u32 s44, {2+spf}
    s_cbranch_scc1 {nopf}
    """)
    for rep in range(10 // spf):
        if 'nospf' in exp: break
        a.e(f"""
        s_buffer_load_dword s93, s[28:31], s48
        s_add_u32 s46, s48, {960*1280}
        s_buffer_load_dword s93, s[28:31], s46
        s_add_u32 s46, s48, {1920*1280}
        s_buffer_load_dword s93, s[28:31], s46
        s_buffer_load_dword s93, s[56:59], s49
        s_add_u32 s46, s49, 128
        s_buffer_load_dword s93, s[56:59], s46
        s_add_u32 s48, s48, 128
        s_add_u32 s49, s49, {64*3840}
        """)
    a.e(f"""
    s_cmp_gt_u32 s44, 3
    s_cbranch_scc1 {nosync}
    s_waitcnt vmcnt(16)
    s_barrier
    s_branch {nosync}
    {nopf}:
    s_cmp_eq_u32 s44, 20
    s_cbranch_scc1 {ph2t}
    s_cmp_eq_u32 s44, {PUB+3}
    s_cbranch_scc1 {sp}
    {nosync}:
    s_waitcnt vmcnt(8)
    {spb}:
    s_barrier
    s_cmp_eq_u32 s44, {PUB+1}
    s_cbranch_scc1 {zok}
    s_cmp_lg_u32 s44, 19
    s_cbranch_scc1 {lp}
    s_mov_b64 exec, 7
    buffer_load_dword v{vPo}, v{vEo+1}, {WS}, s54 offen sc1
    s_mov_b64 exec, -1
    s_branch {lp}
    {zok}:
    buffer_load_dword v{vPo}, v{vEo}, s[60:63], 0 offen sc1
    s_branch {lp}
    """)
    a.c("the hand-off flags must have been cleared before anyone sets or trusts one")
    a.label(sp)
    a.e("s_waitcnt vmcnt(8)")
    a.label(zl)
    a.e(f"""
    v_readfirstlane_b32 s46, v{vPo}
    s_cmp_eq_u32 s46, 1
    s_cbranch_scc1 {spb}
    """)
    bound(spb)
    a.e(f"""
    buffer_load_dword v{vPo}, v{vEo}, s[60:63], 0 offen sc1
    s_waitcnt vmcnt(0)
    s_branch {zl}
    """)
    def check():
        a.e(f"""
        s_mov_b64 exec, 7
        v_cmp_ne_u32 vcc, s96, v{vPo}
        s_mov_b64 exec, -1
        """)
    def pre_first():
        a.e(f"s_mul_i32 s46, s16, 3072\ns_add_u32 m0, s46, {QLDS}\ns_lshl_b32 s47, s16, 11")
        for t in range(3):
            a.e(f"buffer_load_dwordx4 v{vL16}, {WS}, s53 offen offset:{1024*t}{sc} lds")
        a.e("s_mov_b32 m0, s47\ns_nop 0")
        rounds(3)
    def rounds(n):
        for t in range(n):
            a.e(f"buffer_load_dwordx4 v{vL16}, {WS}, s52 offen{sc} lds")
            a.e(f"buffer_load_dwordx4 v{vL16}, {WS}, s52 offen offset:1024{sc} lds")
            a.e("s_add_u32 m0, m0, 8192\ns_add_u32 s52, s52, 8192")
    a.label(ph2t)
    a.c("phase 2 tail: barriers 7, 8 remain; prefetch branch-B Q and K/V once every producer has published")
    late = a.newlabel("late")
    a.e("s_waitcnt vmcnt(8)")
    check()
    a.e("s_barrier")
    a.e(f"s_cbranch_vccnz {late}")
    pre_first()
    a.e("s_waitcnt vmcnt(9)\ns_barrier")
    a.e(f"s_branch {lsecond}")
    a.label(late)
    a.e("s_waitcnt vmcnt(0)\ns_barrier")
    a.label(lpoll)
    a.e(f"s_mov_b64 exec, 7\nbuffer_load_dword v{vPo}, v{vEo+1}, {WS}, s54 offen sc1\ns_mov_b64 exec, -1")
    a.e("s_waitcnt vmcnt(0)")
    check()
    go = a.newlabel("go")
    a.e(f"s_cbranch_vccz {go}")
    bound(go)
    a.e(f"s_sleep 8\ns_branch {lpoll}")
    a.label(go)
    pre_first()
    a.label(lsecond)
    rounds(4)
    a.e(f"s_branch {attn}")
    a.label(idle)
    a.c("workgroups without a GEMM tile; the last one clears the hand-off flags")
    nz = a.newlabel("nz"); z2 = a.newlabel("z2")
    a.e(f"""
    s_cmp_lg_u32 s2, 255
    s_cbranch_scc1 {nz}
    s_cmp_lg_u32 s16, 0
    s_cbranch_scc1 {nz}
    s_mov_b32 s46, {FLAG_OFF}
    buffer_store_dword v{vEo}, v{vXa+1}, {WS}, s46 offen sc1
    s_add_u32 s46, s46, 8192
    buffer_store_dword v{vEo}, v{vXa+1}, {WS}, s46 offen sc1
    s_add_u32 s46, s46, 8192
    buffer_store_dword v{vEo}, v{vXa+1}, {WS}, s46 offen sc1
    s_add_u32 s46, s46, 8192
    buffer_store_dword v{vEo}, v{vXa+1}, {WS}, s46 offen sc1
    v_mov_b32 v{vT0}, 1
    s_waitcnt vmcnt(0)
    s_mov_b64 exec, 1
    buffer_store_dword v{vT0}, v{vEo}, s[60:63], 0 offen sc1
    s_mov_b64 exec, -1
    {nz}:
    """)
    a.e("s_waitcnt lgkmcnt(0)")
    for k in range(IDLE_SLEEP): a.e("s_sleep 127")
    a.label(z2)
    bound(lpoll)
    a.e(f"""
    s_sleep 8
    buffer_load_dword v{vPo}, v{vEo}, s[60:63], 0 offen sc1
    s_waitcnt vmcnt(0)
    v_readfirstlane_b32 s46, v{vPo}
    s_cmp_eq_u32 s46, 1
    s_cbranch_scc0 {z2}
    s_branch {lpoll}
    """)

    a.label(comp)
    a.c("================ GEMM compute waves: 64x64 per wave; th = wave&1, ch = (wave>>1)&1")
    a.e(f"s_waitcnt lgkmcnt(0)\ns_cmp_ge_u32 s32, 30\ns_cbranch_scc1 {attn}")
    a.e(f"""
    s_and_b32 s37, s16, 1
    s_bfe_u32 s38, s16, 0x10001
    s_lshl_b32 s39, s37, 13
    s_add_u32 s39, s39, {RING0}
    v_and_b32 v{vT0}, 15, v{vL}
    v_lshrrev_b32 v{vT2}, 4, v{vL}
    v_lshlrev_b32 v{vT1}, 7, v{vT0}
    v_add_u32 v{vT1}, s39, v{vT1}
    v_bfe_u32 v{vT3}, v{vL}, 1, 3
    v_xor_b32 v{vT3}, v{vT3}, v{vT2}
    v_lshl_add_u32 v{vXa}, v{vT3}, 4, v{vT1}
    v_xor_b32 v{vT3}, 4, v{vT3}
    v_lshl_add_u32 v{vXa+1}, v{vT3}, 4, v{vT1}
    v_bfe_u32 v{vT1}, v{vL}, 2, 2
    v_lshl_add_u32 v{vT1}, v{vT2}, 3, v{vT1}
    v_lshlrev_b32 v{vT1}, 8, v{vT1}
    v_and_b32 v{vT3}, 3, v{vL}
    v_lshl_add_u32 v{vT1}, v{vT3}, 3, v{vT1}
    v_add_u32 v{vT1}, {16384+RING0}, v{vT1}
    v_bfe_u32 v{vT3}, v{vL}, 2, 3
    s_lshl_b32 s39, s38, 2
    v_xor_b32 v{vT3}, s39, v{vT3}
    """)
    for j in range(4):
        a.e(f"v_xor_b32 v{vXo}, {j}, v{vT3}")
        a.e(f"v_lshl_add_u32 v{vWa+j}, v{vXo}, 5, v{vT1}")
    m5 = magic(5, 200); m20 = magic(20, 700)
    vt = f"{name}_vt"
    a.e(f"""
    s_lshl_b32 s41, s17, 2
    s_lshl_b32 s37, s37, 1
    s_add_u32 s41, s41, s37
    s_add_u32 s41, s41, 2048
    s_movk_i32 s50, 1280
    s_cmp_ge_u32 s18, 5
    s_cselect_b32 s48, 1.0, {f32bits(QSCALE)}
    s_cselect_b32 s50, 2560, s50
    s_cselect_b32 s51, 0, {Q_OFF}
    s_cselect_b32 s43, 5, 0
    s_mov_b32 s49, s48
    s_mul_i32 s41, s41, s50
    s_add_u32 s51, s51, s41
    s_lshl_b32 s52, s50, 11
    s_cmp_ge_u32 s18, 10
    s_cbranch_scc1 {vt}
    """)
    def reads(s, b):
        L = []
        for j in range(4):
            L.append(f"ds_read_b64_tr_b16 {vr(WF[b]+4*j,2)}, v{vWa+j} offset:{8192*s}")
            L.append(f"ds_read_b64_tr_b16 {vr(WF[b]+4*j+2,2)}, v{vWa+j} offset:{8192*s+1024}")
            L.append(f"ds_read_b128 {vr(XF[b]+4*j,4)}, v{vXa+s} offset:{2048*j}")
        if 'noread' in exp: L = ["s_nop 0"] * 12
        return L
    def mfmas(b, qk):
        out = []
        for i in range(4):
            for j in range(4):
                X = XF[b] + 4*i; W = WF[b] + 4*j; C = ACC + (j*4 + i)*4
                A, B = (W, X) if qk else (X, W)
                out.append(f"{M16} {vr(C,4)}, {vr(A,4)}, {vr(B,4)}, {vr(C,4)}")
        return out
    def weave(M, F, pattern):
        F = list(F)
        for k, m in enumerate(M):
            a.e(m)
            for _ in range(pattern[k]):
                if F: a.e(F.pop(0))
        assert not F
    def gemm(qk):
        lp = a.newlabel("gloop"); nb = a.newlabel("nb"); sp = a.newlabel("csp"); done = a.newlabel("gdone")
        for r in range(0, 64, 2): a.e(f"v_pk_mov_b32 {vr(ACC+r,2)}, 0, 0")
        a.e(f"s_mov_b32 s22, {RING0}\ns_mov_b32 s44, 0\ns_mov_b32 s47, 10\ns_mov_b32 s41, {PUB}")
        a.e("s_barrier")
        st(1)
        for x in reads(0, 0): a.e(x)
        a.e(".p2align 4")
        a.label(lp)
        a.e("s_waitcnt lgkmcnt(0)")
        rot_ = [f"s_add_u32 s45, s22, {STAGE}", f"s_cmp_eq_u32 s45, {RING_END}", f"s_cselect_b32 s45, {RING0}, s45", "s_sub_u32 s46, s45, s22"]
        rot_ += [f"v_add_u32 v{r}, s46, v{r}" for r in (vXa, vXa+1, vWa, vWa+1, vWa+2, vWa+3)]
        rot_ += ["s_cmp_eq_u32 s44, s41"]
        weave(mfmas(0, qk), reads(1, 1) + rot_, [2,1,2,1,2,1,2,1, 2,2,1,2,1,2,1,0])
        a.e(f"s_waitcnt lgkmcnt(0)\ns_cbranch_scc1 {sp}\ns_barrier")
        a.label(nb)
        if diag:
            a.e(f"s_memtime s[88:89]\ns_mov_b32 m0, s44\ns_waitcnt lgkmcnt(0)\nv_writelane_b32 v{vTr}, s88, m0")
        weave(mfmas(1, qk), reads(0, 0) + ["s_mov_b32 s22, s45", "s_add_u32 s44, s44, 1", "s_cmp_lt_u32 s44, s47"], [2,1,2,1,2,1,2,1, 1,1,1,0,0,0,0,0])
        a.e(f"s_cbranch_scc1 {lp}")
        a.e("s_add_u32 s53, s51, s50")
        a.e("s_nop 6")
        for u in range(2):
            for j in range(4):
                b_ = ACC + (j*4 + 2*u)*4
                dst = EP + (u*4 + j)*4
                if qk:
                    for e in range(4):
                        a.e(f"v_pk_mul_f32 {vr(b_+2*e,2)}, {vr(b_+2*e,2)}, s[48:49]")
                for e in range(4):
                    a.e(f"v_cvt_pk_bf16_f32 v{dst+e}, v{b_+2*e}, v{b_+2*e+1}")
                a.e(f"buffer_store_dwordx4 {vr(dst,4)}, v{vEo+j}, {WS}, s{53 if u else 51} offen{sc}")
        a.e(f"s_cmp_eq_u32 s44, 20\ns_cbranch_scc1 {done}")
        for r in range(0, 64, 2): a.e(f"v_pk_mov_b32 {vr(ACC+r,2)}, 0, 0")
        a.e(f"s_sub_u32 s51, s51, s52\ns_mov_b32 s47, 20")
        st(2)
        a.e(f"s_branch {lp}")
        a.label(sp)
        a.c("last stage needs no barrier; stage PUB: drain the branch-B stores, then one lane publishes")
        a.e(f"""
        s_cmp_eq_u32 s44, 19
        s_cbranch_scc1 {nb}
        s_mov_b32 s41, 19
        s_waitcnt vmcnt(0)
        s_barrier
        """)
        st(3)
        a.e(f"""
        s_cmp_lg_u32 s16, 4
        s_cbranch_scc1 {nb}
        v_lshlrev_b32 v{vT0}, 7, v{vL}
        v_mov_b32 v{vT1}, 1
        s_add_u32 s42, s55, 12288
        s_mov_b64 exec, s[94:95]
        buffer_atomic_add v{vT1}, v{vT0}, {WS}, s42 offen sc1
        s_mov_b64 exec, -1
        s_branch {nb}
        """)
        a.label(done)
        a.e("s_waitcnt lgkmcnt(0)")
    a.e(f"""
    s_sub_u32 s43, s18, s43
    s_lshl_b32 s43, s43, 5
    s_lshl_b32 s39, s38, 4
    s_add_u32 s43, s43, s39
    s_mov_b32 s54, {m5}
    s_lshl_b32 s42, s50, 6
    s_sub_u32 s42, s42, 1280
    """)
    for j in range(4):
        a.e(f"""
        v_add_u32 v{vT1}, s43, v{vT2}
        v_add_u32 v{vT1}, {4*j}, v{vT1}
        v_mul_hi_u32 v{vT3}, s54, v{vT1}
        v_lshlrev_b32 v{vT1}, 8, v{vT1}
        v_mad_u32_u24 v{vT1}, v{vT3}, s42, v{vT1}
        v_lshl_add_u32 v{vEo+j}, v{vT0}, 4, v{vT1}
        """)
    gemm(True)
    a.e(f"s_branch {attn}")
    a.label(vt)
    a.e(f"""
    s_sub_u32 s43, s18, 10
    s_lshl_b32 s43, s43, 7
    s_lshl_b32 s39, s38, 6
    s_add_u32 s43, s43, s39
    s_mov_b32 s54, {m20}
    s_mov_b32 s42, {163840-320}
    v_mul_u32_u24 v{vT2}, 320, v{vT2}
    v_add_u32 v{vT2}, 1280, v{vT2}
    """)
    for j in range(4):
        a.e(f"""
        v_add_u32 v{vT1}, s43, v{vT0}
        v_add_u32 v{vT1}, {16*j}, v{vT1}
        v_mul_hi_u32 v{vT3}, s54, v{vT1}
        v_lshl_add_u32 v{vT1}, v{vT1}, 4, v{vT2}
        v_mad_u32_u24 v{vEo+j}, v{vT3}, s42, v{vT1}
        """)
    gemm(False)

    a.label(attn)
    st(4)
    EXV = "s[20:21]"; EXLO = "s[22:23]"; EXHI = "s[24:25]"
    a.c("s17=head s18=qb s19=kh s26=Ta s27=Tb s28=T (A q-tile) s40=A chunk start tile")
    a.e(f"""
    s_setprio 0
    s_load_dwordx2 s[8:9], s[0:1], 16
    s_load_dwordx2 s[4:5], s[0:1], 40
    s_load_dwordx2 s[56:57], s[0:1], 48
    s_mov_b32 s6, 819200
    s_mov_b32 s10, 819200
    s_mov_b32 s58, 5242880
    s_lshl_b32 s17, s3, 2
    s_and_b32 s35, s32, 3
    s_add_u32 s17, s17, s35
    s_lshr_b32 s18, s32, 2
    v_cmp_gt_u32 vcc, 32, v{vL}
    v_lshlrev_b32 v{vQ1o}, 3, v{vL}
    v_add_u32 v{vT2}, 1024, v{vQ1o}
    v_mov_b32 v{vT1}, 0x40000000
    v_cndmask_b32 v{vQ2o}, v{vT1}, v{vT2}, vcc
    s_lshr_b32 s19, s16, 2
    s_and_b32 s35, s16, 3
    s_lshl_b32 s35, s35, 1
    s_add_u32 s35, s35, s19
    s_lshl_b32 s28, s18, 3
    s_add_u32 s26, s28, s35
    s_mul_i32 s30, s35, 1280
    s_xor_b32 s35, s35, 1
    s_mul_i32 s31, s35, 1280
    s_sub_u32 s40, s28, 8
    s_max_i32 s40, s40, 0
    s_add_u32 s28, s28, s16
    s_add_u32 s29, s17, 32
    s_lshl_b32 s29, s29, 6
    s_mul_i32 s34, s29, 2560
    s_lshl_b32 s33, s16, 10
    s_add_u32 s34, s34, s33
    s_add_u32 s34, s34, {7*8192}
    s_add_u32 m0, s33, {7*8192}
    s_lshl_b32 s38, s17, 6
    s_add_u32 s39, s38, s28
    s_mul_i32 s39, s39, 1280
    s_add_u32 s39, s39, {Q_OFF}
    s_add_u32 s41, s38, s40
    s_mul_i32 s41, s41, 2560
    s_add_u32 s41, s41, s33
    s_mov_b32 s42, 7
    s_mov_b32 s43, 0x40000000
    v_lshlrev_b32 v{vP4+1}, 12, v{vL}
    v_min_u32 v{vP4+1}, 8192, v{vP4+1}
    s_mov_b32 s20, 0x000fffff
    s_mov_b32 s21, 0x000fffff
    s_mov_b32 s22, -1
    s_mov_b32 s23, 0
    s_mov_b32 s24, 0
    s_mov_b32 s25, -1
    s_mov_b32 s36, 0xff800000
    s_mov_b32 s37, 0xffff0000
    v_and_b32 v{vT0}, 31, v{vL}
    v_lshrrev_b32 v{vT1}, 5, v{vL}
    v_mul_u32_u24 v{vVo}, 320, v{vT1}
    v_lshl_add_u32 v{vVo}, v{vT0}, 4, v{vVo}
    v_add_u32 v{vVo}, 1280, v{vVo}
    v_mov_b32 v{vKa}, v{vQ1o}
    v_bfe_u32 v{vT2}, v{vL}, 4, 1
    v_mul_u32_u24 v{vOo}, 20480, v{vT2}
    v_lshl_add_u32 v{vOo}, v{vT1}, 8, v{vOo}
    v_and_b32 v{vT2}, 15, v{vL}
    v_lshl_add_u32 v{vOo}, v{vT2}, 4, v{vOo}
    v_add_u32 v{vT0}, {QLDS}, v{vQ1o}
    v_add_u32 v{vT1}, s31, v{vT0}
    v_add_u32 v{vT0}, s30, v{vT0}
    """)
    a.c("projection tile: tb = 4*xcd + (idx&3) = head index value, cbk = idx>>2 = qb value")
    a.e(f"""
    s_mov_b32 s44, {magic(10, 4096)}
    s_lshl_b32 s45, s16, 6
    s_mul_i32 s46, s18, 160
    s_movk_i32 s47, 1120
    """)
    for t in range(5):
        a.e(f"""
        v_add_u32 v{vT2}, s45, v{vL}
        v_add_u32 v{vT2}, {512*t}, v{vT2}
        v_mul_hi_u32 v{vT3}, s44, v{vT2}
        v_lshlrev_b32 v{vT2}, 4, v{vT2}
        v_mad_u32_u24 v{vT2}, v{vT3}, s47, v{vT2}
        v_add_u32 v{vWd+t}, s46, v{vT2}
        """)
    a.e(f"""
    s_mul_i32 s45, s19, 51200
    s_add_u32 s45, s45, {WOL}
    v_lshrrev_b32 v{vT2}, 5, v{vL}
    v_mul_u32_u24 v{vT2}, 20, v{vT2}
    v_bfe_u32 v{vT3}, v{vL}, 2, 3
    v_add_u32 v{vT2}, v{vT2}, v{vT3}
    v_mul_u32_u24 v{vT2}, 160, v{vT2}
    v_and_b32 v{vT3}, 3, v{vL}
    v_mul_u32_u24 v{vT3}, 40, v{vT3}
    v_add_u32 v{vT3}, s45, v{vT3}
    v_add_u32 v{vPa}, v{vT2}, v{vT3}
    v_lshrrev_b32 v{vT2}, 4, v{vL}
    v_mul_u32_u24 v{vOut}, 40, v{vT2}
    v_mul_u32_u24 v{vT2}, 20, v{vT2}
    v_bfe_u32 v{vSig}, v{vL}, 2, 2
    v_add3_u32 v{vT2}, v{vT2}, v{vSig}, 16
    v_mul_u32_u24 v{vT2}, 160, v{vT2}
    v_add_u32 v{vPa+1}, v{vT2}, v{vT3}
    v_and_b32 v{vT2}, 15, v{vL}
    v_mul_u32_u24 v{vT2}, 2560, v{vT2}
    v_add_u32 v{vOut}, v{vOut}, v{vT2}
    v_cmp_eq_u32 vcc, 0, v0
    v_mov_b32 v{vT2}, 0x40000000
    s_lshl_b32 s98, s17, 2
    s_and_b32 s45, s16, 3
    s_add_u32 s98, s98, s45
    v_cndmask_b32 v{vSig}, v{vT2}, 0, vcc
    s_mul_i32 s99, s98, {16*2560}
    s_add_u32 s99, s99, s46
    s_mul_i32 s98, s98, 20480
    s_add_u32 s98, s98, {O_OFF}
    """)
    a.c("s98 = O fragment base of this wave's token tile (branch A), s99 = output base (branch A)")
    for p in range(2):
        for r in range(0, 8, 2): a.e(f"v_pk_mov_b32 {vr(V[p]+r,2)}, 0, 0")
        for r in range(2): a.e(f"v_mov_b32 v{K2[p]+r}, {ONES}")
        for r in range(0, 16, 2): a.e(f"v_pk_mov_b32 {vr(O[p]+r,2)}, 0, 0")
        a.e(f"v_pk_mov_b32 {vr(Q2[p],2)}, 0, 0")
    for r in range(0, 8, 2): a.e(f"v_pk_mov_b32 {vr(P[1]+r,2)}, 0, 0")
    a.e("s_mov_b32 exec_lo, 0x11000000\ns_mov_b32 exec_hi, 0x11000000")
    for p in range(2):
        for r in range(8): a.e(f"v_mov_b32 v{V[p]+r}, v{K2[0]}")
    a.e("s_mov_b64 exec, -1")

    def rdK1(p, off): a.e(f"ds_read2st64_b64 {vr(K1[p],4)}, v{vKa} offset0:{off//512} offset1:{off//512+1}")
    def rdK2(p, off): a.e(f"ds_read_b64 {vr(K2[p],2)}, v{vKa} offset:{off+1024}")
    def rdV(p, off):
        a.e(f"ds_read_b128 {vr(V[p],4)}, v{vVa} offset:{off}")
        a.e(f"ds_read_b128 {vr(V[p]+4,4)}, v{vVa} offset:{off+640}")
    def readK(p, off):
        rdK1(p, off); a.e(f"s_mov_b64 exec, {EXLO}"); rdK2(p, off); a.e("s_mov_b64 exec, -1")
    def readV(p, off):
        a.e(f"s_mov_b64 exec, {EXV}"); rdV(p, off); a.e("s_mov_b64 exec, -1")
    def readKV(pk, offk, pv_, offv):
        rdK1(pk, offk); a.e(f"s_mov_b64 exec, {EXLO}"); rdK2(pk, offk)
        a.e(f"s_mov_b64 exec, {EXV}"); rdV(pv_, offv); a.e("s_mov_b64 exec, -1")
    def qk(s, p, q):
        return [f"{MF} {vr(S[s],16)}, {vr(K1[p],4)}, {vr(Q1[q],4)}, 0",
                f"{MF8} {vr(S[s],16)}, {vr(K2[p],2)}, {vr(Q2[q],2)}, {vr(S[s],16)}"]
    def pv(o, p, pp):
        return [f"{MF} {vr(O[o],16)}, {vr(V[p],4)}, {vr(P[pp],4)}, {vr(O[o],16)}",
                f"{MF} {vr(O[o],16)}, {vr(V[p]+4,4)}, {vr(P[pp]+4,4)}, {vr(O[o],16)}"]
    def expgrp(s, pp, g):
        for r in range(4*g, 4*g+4): a.e(f"v_exp_f32 v{S[s]+r}, v{S[s]+r}")
        for e in range(2*g, 2*g+2): a.e(f"v_cvt_pk_bf16_f32 v{P[pp]+e}, v{S[s]+2*e}, v{S[s]+2*e+1}")
    def maxtree(dst, s, first=True):
        b = S[s]
        if first:
            a.e(f"v_max3_f32 v{dst}, v{b}, v{b+1}, v{b+2}")
            for r in range(3, 15, 2): a.e(f"v_max3_f32 v{dst}, v{dst}, v{b+r}, v{b+r+1}")
            a.e(f"v_max_f32 v{dst}, v{dst}, v{b+15}")
        else:
            for r in range(0, 16, 2): a.e(f"v_max3_f32 v{dst}, v{dst}, v{b+r}, v{b+r+1}")
    def crossmax(m):
        a.e(f"""
        v_mov_b32 v{vT3}, v{m}
        s_nop 1
        v_permlane32_swap_b32 v{vT3}, v{m}
        s_nop 1
        v_max_f32 v{m}, v{m}, v{vT3}
        """)
    def patchQ(q, m):
        a.e(f"""
        v_sub_f32 v{vT0}, 0, v{m}
        v_and_b32 v{vT1}, s37, v{vT0}
        v_sub_f32 v{vT0}, v{vT0}, v{vT1}
        v_and_b32 v{vT2}, s37, v{vT0}
        v_sub_f32 v{vT0}, v{vT0}, v{vT2}
        v_lshrrev_b32 v{vT1}, 16, v{vT1}
        s_mov_b64 exec, {EXHI}
        v_or_b32 v{Q2[q]}, v{vT1}, v{vT2}
        v_lshrrev_b32 v{Q2[q]+1}, 16, v{vT0}
        s_mov_b64 exec, -1
        """)
    def mask(s, diag_):
        for r in range(16):
            j0 = 8*(r >> 2) + (r & 3)
            lo = (1 << j0) - 1; hi = (1 << (j0 + 4)) - 1
            if not diag_: lo ^= 0xffffffff; hi ^= 0xffffffff
            a.e(f"s_mov_b32 exec_lo, 0x{lo:x}")
            a.e(f"s_mov_b32 exec_hi, 0x{hi:x}")
            a.e(f"v_mov_b32 v{S[s]+r}, s36")
        a.e("s_mov_b64 exec, -1")
    def loaders_wait(n):
        l = a.newlabel("lw")
        a.e(f"s_cmp_ge_u32 s16, 4\ns_cbranch_scc1 {l}\ns_waitcnt vmcnt({n})")
        a.label(l)

    a.c("---- B prologue")
    a.e("s_waitcnt lgkmcnt(0)")
    loaders_wait(12)
    a.e("s_barrier")
    st(5)
    for q, ad in ((0, vT0), (1, vT1)):
        a.e(f"ds_read2st64_b64 {vr(Q1[q],4)}, v{ad} offset0:0 offset1:1")
    rdK1(0, 0)
    a.e(f"s_mov_b64 exec, {EXLO}")
    for q, ad in ((0, vT0), (1, vT1)):
        a.e(f"ds_read_b64 {vr(Q2[q],2)}, v{ad} offset:1024")
    rdK2(0, 0)
    a.e("s_mov_b64 exec, -1")
    a.e(f"s_mul_i32 s35, s19, 2560")
    a.e("s_waitcnt lgkmcnt(0)")
    for m in qk(0, 0, 0) + qk(1, 0, 1): a.e(m)
    a.e(f"v_add_u32 v{vKa}, s35, v{vKa}")
    a.e(f"v_add_u32 v{vVa}, s35, v{vVo}")
    readKV(0, 0, 0, 0)
    a.e("s_nop 3")
    maxtree(vM, 0); crossmax(vM); patchQ(0, vM)
    maxtree(vM, 1); crossmax(vM); patchQ(1, vM)
    loaders_wait(0)
    a.e("s_waitcnt lgkmcnt(0)")
    a.e("s_barrier")
    for m in qk(0, 0, 0): a.e(m)
    readK(1, 5120)
    a.c("pull both Wo into this XCD's L2; projection constants")
    m10 = magic(10, 4096)
    a.e(f"""
    s_lshl_b32 s35, s32, 3
    s_add_u32 s35, s35, s16
    s_mul_i32 s35, s35, 3200
    v_lshlrev_b32 v{vT0}, 7, v{vL}
    s_mov_b64 exec, 0x1ffffff
    buffer_load_dword v{vLo}, v{vT0}, s[4:7], s35 offen
    buffer_load_dword v{vM}, v{vT0}, s[8:11], s35 offen
    s_mov_b64 exec, -1
    """)
    st(6)
    a.e("s_mov_b32 s35, 0")
    a.e("s_nop 6")
    loop = a.newlabel("bloop"); it1 = a.newlabel("it1"); it2 = a.newlabel("it2")
    U = 8
    a.e(".p2align 4")
    a.label(loop)
    for t in range(U):
        p = t & 1
        if prio and (t == 0 or prio[t] != prio[t-1]): a.e(f"s_setprio {prio[t]}")
        m = qk(1, p, 1) + pv(1, 1 - p, 1)
        for g in range(4):
            a.e(m[g])
            if g == 1 and t < 5:
                a.e(f"buffer_load_dwordx4 v{vL16}, {WS}, s34 offen{sc} lds")
                a.e(f"""
                s_add_u32 m0, m0, 8192
                s_add_u32 s34, s34, 8192
                s_add_u32 s42, s42, 1
                s_cmp_eq_u32 s42, 20
                s_cselect_b32 s34, s41, s34
                s_cselect_b32 m0, s33, m0
                s_cmp_eq_u32 s42, 25
                s_cselect_b32 s34, 0x40000000, s34
                """)
            expgrp(0, 0, g)
        m = qk(0, 1 - p, 0) + pv(0, p, 0)
        a.e("s_waitcnt lgkmcnt(0)")
        for g in range(4):
            a.e(m[g])
            if g == 0: readKV(p, (t+2)*5120, 1-p, (t+1)*5120)
            if g == 2 and t == 5:
                a.e(f"buffer_load_dword v{vP4}, v{vP4+1}, {WS}, s43 offen sc1")
            expgrp(1, 1, g)
    a.e(f"""
    v_add_u32 v{vKa}, {U*5120}, v{vKa}
    v_add_u32 v{vVa}, {U*5120}, v{vVa}
    s_add_u32 s35, s35, 1
    s_cmp_eq_u32 s35, 3
    s_waitcnt vmcnt(0)
    s_barrier
    s_cbranch_scc1 {loop}
    s_cmp_eq_u32 s35, 1
    s_cbranch_scc1 {it1}
    s_cmp_eq_u32 s35, 2
    s_cbranch_scc1 {it2}
    """)
    st(7)
    slow = []
    def finalize(br, sT, q, oi, after_check=None):
        sl = a.newlabel("slow"); ret = a.newlabel("ret")
        o = O[oi]; pk = P[oi]
        a.e(f"v_add_f32 v{vT0}, abs(v{o}), abs(v{o+1})")
        a.e(f"v_add_f32 v{vT1}, abs(v{o+2}), abs(v{o+3})")
        for r in range(4, 12): a.e(f"v_add_f32 v{vT0 + (r & 1)}, v{vT0 + (r & 1)}, abs(v{o+r})")
        a.e(f"""
        v_add_f32 v{vT0}, v{vT0}, v{vT1}
        s_mov_b32 s44, 0x7b800000
        s_mov_b32 s45, 0x35800000
        s_mov_b32 s46, 0x7f800000
        v_cmp_nlt_f32 s[48:49], v{o+12}, s44
        v_cmp_ngt_f32 s[50:51], v{o+12}, s45
        v_cmp_nlt_f32 s[52:53], v{vT0}, s46
        s_or_b64 s[48:49], s[48:49], s[50:51]
        s_or_b64 s[48:49], s[48:49], s[52:53]
        s_cbranch_scc1 {sl}
        {ret}:
        v_rcp_f32 v{vT0}, v{o+12}
        """)
        if after_check: after_check()
        a.e(f"""
        s_mul_i32 s44, s{sT}, 40960
        s_add_u32 s44, s44, {O_OFF + br*2621440}
        s_lshl_b32 s45, s17, 9
        s_add_u32 s45, s45, s44
        s_lshr_b32 s46, s17, 3
        s_lshl_b32 s46, s46, 10
        s_add_u32 s46, s46, s44
        s_and_b32 s47, s17, 3
        s_lshl_b32 s47, s47, 8
        s_add_u32 s46, s46, s47
        s_bfe_u32 s47, s17, 0x10002
        s_lshl_b32 s47, s47, 3
        s_add_u32 s46, s46, s47
        s_add_u32 s46, s46, 16384
        """)
        for r in range(12): a.e(f"v_mul_f32 v{o+r}, v{vT0}, v{o+r}")
        pk = o
        for e in range(6): a.e(f"v_cvt_pk_bf16_f32 v{pk+e}, v{o+2*e}, v{o+2*e+1}")
        a.e(f"""
        buffer_store_dwordx4 {vr(pk,4)}, v{vOo}, {WS}, s45 offen{sc}
        s_mov_b64 exec, {EXLO}
        buffer_store_dwordx2 {vr(pk+4,2)}, v{vOo}, {WS}, s46 offen{sc}
        s_mov_b64 exec, -1
        """)
        slow.append((sl, ret, br, sT, q, oi))
    a.e("s_setprio 3")
    for m in pv(1, 1, 1): a.e(m)
    a.e(f"""
    s_sub_u32 s42, s28, s40
    s_sub_u32 s42, s42, 9
    s_mul_i32 s42, s42, 2560
    s_waitcnt lgkmcnt(0)
    v_add_u32 v{vKa}, s42, v{vQ1o}
    v_add_u32 v{vVa}, s42, v{vVo}
    """)
    off = lambda i: (9 - i) * 2560
    readK(1, off(1))
    a.e(f"""
    s_lshl_b32 s35, s16, 12
    s_add_u32 s35, s35, {XCH}
    v_add_u32 v{vT0}, s35, v{vL16}
    s_xor_b32 s35, s35, 16384
    v_add_u32 v{vLo}, s35, v{vL16}
    """)
    for q in range(4):
        a.e(f"ds_write_b128 v{vT0}, {vr(O[1]+4*q,4)} offset:{1024*q}")
    a.e("s_waitcnt lgkmcnt(4)")
    t0 = a.newlabel("t0"); t0b = a.newlabel("t0b")
    a.e(f"s_cmp_eq_u32 s28, 0\ns_cbranch_scc1 {t0}")
    for m in qk(1, 1, 2): a.e(m)
    a.label(t0b)
    a.e(f"""
    s_add_u32 m0, s33, {WOL}
    s_mov_b32 s34, 0
    s_lshl_b32 s41, s18, 7
    s_add_u32 s41, s41, {C2_OFF}
    s_lshl_b32 s39, s3, 7
    s_add_u32 s39, s39, {C2_OFF}
    s_waitcnt lgkmcnt(0)
    s_barrier
    """)
    for q in range(4):
        a.e(f"ds_read_b128 {vr(S[0]+4*q,4)}, v{vLo} offset:{1024*q}")
    maxtree(vM, 1); crossmax(vM); patchQ(2, vM)
    for r in range(0, 16, 2): a.e(f"v_pk_mov_b32 {vr(O[1]+r,2)}, 0, 0")
    a.e("s_waitcnt lgkmcnt(0)")
    for r in range(13):
        a.e(f"v_add_f32 v{O[0]+r}, v{O[0]+r}, v{S[0]+r}")
    finalize(1, 26, 0, 0, after_check=lambda: readKV(0, off(0), 0, off(0)))
    a.e("s_waitcnt lgkmcnt(2)")
    for m in qk(0, 0, 2): a.e(m)
    wo_t = [0]
    def wodma(srd):
        t = wo_t[0]; wo_t[0] += 1
        a.e(f"buffer_load_dwordx4 v{vWd + t % 5}, {srd}, s34 offen lds")
        a.e("s_add_u32 m0, m0, 8192")
        a.e(f"s_add_u32 s34, s34, {256*1280}" if t % 5 == 4 else "s_nop 0")
    wodma("s[4:7]"); wodma("s[4:7]")
    a.e("s_nop 4")
    mask(0, True)
    st(8)
    outl = []
    for i in range(9):
        s = i & 1
        if i == 5:
            a.c("branch-B O is drained in every wave -> publish; the exchange area is dead")
            a.e(f"""
            v_mov_b32 v{vT1}, 1
            s_waitcnt vmcnt(8)
            s_barrier
            buffer_atomic_add v{vT1}, v{vSig}, {WS}, s41 offen offset:1024 sc1
            """)
        if prioA and (i == 0 or prioA[i] != prioA[i-1]): a.e(f"s_setprio {prioA[i]}")
        if i >= 1:
            la = a.newlabel("ma"); lb = a.newlabel("mb")
            a.e(f"s_cmp_lt_u32 s28, {i}\ns_cbranch_scc1 {la}")
            if i == 8: mask(s, False)
            a.label(lb)
            outl.append((la, lb, s))
        m = (qk(1 - s, 1 - s, 2) if i < 8 else []) + (pv(1, 1 - s, 1 - s) if i > 0 else [])
        slots = {0: [], 1: [], 2: [], 3: []}
        if len(m) == 4:
            for g in range(4): slots[g].append(m[g])
        else:
            slots[0].append(m[0]); slots[2].append(m[1])
        if i > 0: a.e("s_waitcnt lgkmcnt(2)")
        for g in range(4):
            for x in slots[g]: a.e(x)
            if g == 0 and i < 7: readK(s, off(i + 2))
            if g in (1, 2) and (i < 3 or (i >= 5 and wo_t[0] < 13)): wodma("s[4:7]")
            if g == 3 and i < 8: readV(1 - s, off(i + 1))
            expgrp(s, s, g)
    assert wo_t[0] == 13
    a.e("s_waitcnt lgkmcnt(0)")
    a.e(f"buffer_load_dword v{vP4}, v{vSig}, {WS}, s39 offen offset:1024 sc1")
    for m in pv(1, 0, 0): a.e(m)
    a.e("s_nop 12")
    st(9)
    finalize(0, 28, 2, 1)
    st(10)

    def pollO(br):
        l = a.newlabel("po"); ok = a.newlabel("pok")
        a.e(f"s_cmp_lg_u32 s16, 0\ns_cbranch_scc1 {ok}")
        a.label(l)
        a.e(f"v_readfirstlane_b32 s44, v{vP4}\ns_cmp_eq_u32 s44, 32\ns_cbranch_scc1 {ok}")
        bound(ok)
        a.e(f"buffer_load_dword v{vP4}, v{vSig}, {WS}, s39 offen offset:{1024*br} sc1\ns_waitcnt vmcnt(0)\ns_branch {l}")
        a.label(ok)
    def oloads(br):
        a.e(f"""
        s_lshl_b32 s44, s19, 13
        s_add_u32 s44, s44, s98
        s_add_u32 s44, s44, {br*2621440}
        s_lshl_b32 s45, s19, 11
        s_add_u32 s45, s45, s98
        s_add_u32 s45, s45, {br*2621440 + 16384}
        """)
        for i in range(8):
            if i == 4: a.e("s_add_u32 s44, s44, 4096")
            a.e(f"buffer_load_dwordx4 {vr(OF+4*i,4)}, v{vL16}, {WS}, s44 offen offset:{(i%4)*1024}{sc}")
        for i in range(2):
            a.e(f"buffer_load_dwordx4 {vr(OF+32+4*i,4)}, v{vL16}, {WS}, s45 offen offset:{i*1024}{sc}")
    def preads(j, b):
        L = []
        for t in range(5):
            if j < 8: ad = vPa; o1 = j * 6400 + 8*t; o2 = o1 + 1280
            else: ad = vPa + 1; o1 = (j - 8) * 25600 + 8*t; o2 = o1 + 12800
            L.append(f"ds_read_b64_tr_b16 {vr(PW[b]+4*t,2)}, v{ad} offset:{o1}")
            L.append(f"ds_read_b64_tr_b16 {vr(PW[b]+4*t+2,2)}, v{ad} offset:{o2}")
        return L
    def pcompute(extra):
        for j in range(10):
            a.e(f"s_waitcnt vmcnt({9 - j + extra}) lgkmcnt(0)")
            M = [f"{M16} {vr(PA+4*t,4)}, {vr(PW[j&1]+4*t,4)}, {vr(OF+4*j,4)}, {vr(PA+4*t,4) if j else 0}" for t in range(5)]
            weave(M, preads(j + 1, (j + 1) & 1) if j < 9 else [], [3, 3, 2, 2, 0])
    def preduce(br, after_barrier=None):
        lo = a.newlabel("plo"); dn = a.newlabel("pdn")
        a.e(f"""
        s_and_b32 s44, s16, 3
        s_mul_i32 s44, s44, 5120
        v_add_u32 v{vT0}, s44, v{vL16}
        s_add_u32 s45, s99, {br*1280}
        s_cmp_eq_u32 s19, 0
        s_nop 2
        s_cbranch_scc1 {lo}
        """)
        for q in range(5): a.e(f"ds_write_b128 v{vT0}, {vr(PA+4*q,4)} offset:{1024*q}")
        a.e(f"s_waitcnt lgkmcnt(0)\ns_barrier\ns_branch {dn}")
        a.label(lo)
        a.e("s_barrier")
        for q in range(5): a.e(f"ds_read_b128 {vr(PW[0]+4*q,4)}, v{vT0} offset:{1024*q}")
        for q in range(5):
            a.e(f"s_waitcnt lgkmcnt({4-q})")
            for r in range(4): a.e(f"v_add_f32 v{PA+4*q+r}, v{PA+4*q+r}, v{PW[0]+4*q+r}")
            for e in range(2): a.e(f"v_cvt_pk_bf16_f32 v{PW[1]+2*q+e}, v{PA+4*q+2*e}, v{PA+4*q+2*e+1}")
        a.e(f"""
        buffer_store_dwordx4 {vr(PW[1],4)}, v{vOut}, s[56:59], s45 offen
        buffer_store_dwordx4 {vr(PW[1]+4,4)}, v{vOut}, s[56:59], s45 offen offset:16
        buffer_store_dwordx2 {vr(PW[1]+8,2)}, v{vOut}, s[56:59], s45 offen offset:32
        """)
        a.label(dn)
    a.c("---- projection of branch B")
    a.e("s_setprio 0")
    a.e("s_waitcnt vmcnt(2)")
    pollO(1)
    a.e("s_barrier")
    st(11)
    oloads(1)
    for x in preads(0, 0): a.e(x)
    a.e(f"""
    v_mov_b32 v{vT1}, 1
    s_waitcnt vmcnt(10)
    s_barrier
    buffer_atomic_add v{vT1}, v{vSig}, {WS}, s41 offen sc1
    """)
    pcompute(1)
    preduce(1)
    st(12)
    a.c("---- projection of branch A")
    a.e(f"s_add_u32 m0, s33, {WOL}\ns_mov_b32 s34, 0")
    wo_t[0] = 0
    for t in range(13): wodma("s[8:11]")
    a.e(f"buffer_load_dword v{vP4}, v{vSig}, {WS}, s39 offen sc1")
    a.e("s_waitcnt vmcnt(0)")
    pollO(0)
    a.e("s_barrier")
    st(13)
    oloads(0)
    for x in preads(0, 0): a.e(x)
    pcompute(0)
    preduce(0)
    st(14)
    if diag: a.e("s_waitcnt vmcnt(0)")
    st(15)
    if diag:
        a.e(f"""
        v_writelane_b32 v{vTr}, s87, 63
        s_mov_b32 s14, 0x10000000
        s_lshl_b32 s44, s2, 3
        s_add_u32 s44, s44, s16
        s_lshl_b32 s44, s44, 8
        s_add_u32 s44, s44, {STAMP_OFF + 3*1024*1024}
        v_lshlrev_b32 v{vT0}, 2, v{vL}
        buffer_store_dword v{vTr}, v{vT0}, {WS}, s44 offen
        """)
    st.flush(n=16)
    a.label(end)
    a.e("s_endpgm")
    a.label(it1)
    a.c("after chunk 0: every wave drained its branch-A stores -> publish")
    a.e(f"""
    s_mov_b32 s43, s97
    s_cmp_lg_u32 s16, 0
    s_cbranch_scc1 {loop}
    s_cmp_ge_u32 s32, 30
    s_cbranch_scc1 {loop}
    v_lshlrev_b32 v{vT0}, 7, v{vL}
    v_mov_b32 v{vT1}, 1
    s_mov_b64 exec, s[94:95]
    buffer_atomic_add v{vT1}, v{vT0}, {WS}, s55 offen sc1
    s_mov_b64 exec, -1
    s_branch {loop}
    """)
    a.label(it2)
    a.c("after chunk 1: branch-A Q/K/V must be published before this wave loads them")
    okA = a.newlabel("okA")
    a.e(f"""
    v_cmp_ne_u32 vcc, s96, v{vP4}
    s_cbranch_vccz {okA}
    """)
    bound(okA)
    a.e(f"""
    s_sleep 2
    buffer_load_dword v{vP4}, v{vP4+1}, {WS}, s43 offen sc1
    s_waitcnt vmcnt(0)
    s_branch {it2}
    {okA}:
    s_mov_b32 s43, 0x40000000
    buffer_load_dwordx2 {vr(Q1[2],2)}, v{vQ1o}, {WS}, s39 offen{sc}
    buffer_load_dwordx2 {vr(Q1[2]+2,2)}, v{vQ1o}, {WS}, s39 offen offset:512{sc}
    buffer_load_dwordx2 {vr(Q2[2],2)}, v{vQ2o}, {WS}, s39 offen{sc}
    s_branch {loop}
    """)
    a.label(t0)
    readK(1, off(0))
    a.e("s_waitcnt lgkmcnt(0)")
    for m in qk(1, 1, 2): a.e(m)
    a.e("s_nop 10")
    mask(1, True)
    a.e(f"s_branch {t0b}")
    for (la, lb, s) in outl:
        a.label(la)
        for r in range(16): a.e(f"v_mov_b32 v{S[s]+r}, s36")
        a.e(f"s_branch {lb}")
    for (sl, ret, br, sT, q, oi) in slow:
        a.label(sl)
        a.c("exact two-pass softmax with the true row max")
        a.e(f"s_mov_b64 exec, {EXHI}")
        a.e(f"v_mov_b32 v{Q2[q]}, 0")
        a.e(f"v_mov_b32 v{Q2[q]+1}, 0")
        a.e(f"s_mov_b64 exec, -1")
        if br == 1:
            a.e(f"s_mov_b32 s29, 0\ns_mov_b32 s30, 63\ns_movk_i32 s31, 2048\nv_mov_b32 v{vLo}, 0")
        else:
            a.e(f"""
            s_sub_u32 s29, s{sT}, 8
            s_max_i32 s29, s29, 0
            s_mov_b32 s30, s{sT}
            s_movk_i32 s31, 256
            s_lshl_b32 s38, s{sT}, 5
            s_sub_u32 s38, s38, 255
            v_and_b32 v{vLo}, 31, v{vL}
            v_add_u32 v{vLo}, s38, v{vLo}
            """)
        a.e(f"""
        v_lshrrev_b32 v{vT1}, 5, v{vL}
        v_lshlrev_b32 v{vT2}, 2, v{vT1}
        v_sub_u32 v{vLo}, v{vLo}, v{vT2}
        v_mov_b32 v{vM}, s36
        v_mov_b32 v{S[1]}, s36
        s_add_u32 s54, s17, {br*32}
        s_lshl_b32 s54, s54, 6
        s_mov_b32 s55, 0
        """)
        for r in range(16): a.e(f"v_mov_b32 v{O[oi]+r}, 0")
        dn_ = a.newlabel("dn"); pl = a.newlabel("pass"); tl = a.newlabel("tile"); p2 = a.newlabel("p2"); nx = a.newlabel("nx")
        a.label(pl)
        a.e("s_mov_b32 s42, s29")
        a.label(tl)
        a.e(f"""
        s_add_u32 s43, s54, s42
        s_mul_i32 s43, s43, 2560
        buffer_load_dwordx2 {vr(K1[0],2)}, v{vQ1o}, {WS}, s43 offen{sc}
        buffer_load_dwordx2 {vr(K1[0]+2,2)}, v{vQ1o}, {WS}, s43 offen offset:512{sc}
        buffer_load_dwordx2 {vr(K2[0],2)}, v{vQ2o}, {WS}, s43 offen{sc}
        s_mov_b64 exec, {EXV}
        buffer_load_dwordx4 {vr(V[0],4)}, v{vVo}, {WS}, s43 offen{sc}
        buffer_load_dwordx4 {vr(V[0]+4,4)}, v{vVo}, {WS}, s43 offen offset:640{sc}
        s_mov_b64 exec, -1
        s_lshl_b32 s38, s42, 5
        v_sub_u32 v{vT0}, s38, v{vLo}
        s_waitcnt vmcnt(0)
        """)
        for m in qk(0, 0, q): a.e(m)
        a.e("s_nop 15")
        for r in range(16):
            j0 = 8*(r >> 2) + (r & 3)
            a.e(f"v_add_u32 v{vT1}, {j0}, v{vT0}")
            a.e(f"v_cmp_gt_u32 vcc, s31, v{vT1}")
            a.e("s_nop 1")
            a.e(f"v_cndmask_b32 v{S[0]+r}, v{S[1]}, v{S[0]+r}, vcc")
        a.e(f"s_cmp_eq_u32 s55, 1\ns_cbranch_scc1 {p2}")
        maxtree(vM, 0, first=False)
        a.e(f"s_branch {nx}")
        a.label(p2)
        for r in range(16): a.e(f"v_sub_f32 v{S[0]+r}, v{S[0]+r}, v{vM}")
        for g in range(4): expgrp(0, oi, g)
        a.e("s_nop 1")
        for m in pv(oi, 0, oi): a.e(m)
        a.e("s_nop 7")
        a.label(nx)
        a.e(f"""
        s_add_u32 s42, s42, 1
        s_cmp_le_u32 s42, s30
        s_cbranch_scc1 {tl}
        s_nop 15
        s_cmp_eq_u32 s55, 1
        s_cbranch_scc1 {dn_}
        """)
        crossmax(vM)
        a.e(f"s_mov_b32 s55, 1\ns_branch {pl}")
        a.label(dn_)
        a.e(f"v_mov_b32 v{K2[0]}, {ONES}\nv_mov_b32 v{K2[0]+1}, {ONES}\ns_branch {ret}")
    return nv
```

```python
import sys
from asmlib import *
import f2
NAME = "concat_heads__sliding_block__softmax_full_mha__prompt"
HEAD = open(f"cdna_kernels/{NAME}.s.ref").read().split("; Override")[0]
def build(out, diag=False, mod=f2, **kw):
    a = Asm()
    kn = NAME + "_kernel"
    n1 = mod.gen_main(a, name=kn, diag=diag, **kw)
    s = HEAD
    s += f"; @launch grid=(256,1,1) block=(512,1,1) lds={mod.F1_LDS}\n"
    s += '.amdgcn_target "amdgcn-amd-amdhsa--gfx950"\n.text\n'
    s += a.text()
    s += '.section .rodata,"a"\n.p2align 6\n' + kd(kn, n1, sgpr=102)
    open(out, "w").write(s)
    print(out, "vgprs", n1)
if __name__ == "__main__":
    build("g_d.s", diag=True, exp="nospf", atouch=1)
    build("g_n.s", exp="nospf", atouch=1)
```
